```python
import torch

def _softmax(x, axis=-1):
    return torch.softmax(x, dim=axis)
def _gelu(x):
    return torch.nn.functional.gelu(x, approximate="tanh")
def _silu(x):
    return torch.nn.functional.silu(x)
def _sigmoid(x):
    return torch.sigmoid(x)
def _layernorm(x, axis=-1, eps=1e-5):
    m = x.mean(dim=axis, keepdim=True)
    v = x.var(dim=axis, keepdim=True, unbiased=False)
    return (x - m) / torch.sqrt(v + eps)
def _scatter_add(tgt, idx, src, axis=0):
    return tgt.clone().index_add_(axis, idx, src)
def _segment_sum(src, seg, n):
    out = torch.zeros((n,) + src.shape[1:], dtype=src.dtype)
    return out.index_add_(0, seg, src)
def _pad(x, pw):
    flat = tuple(v for pair in reversed(pw) for v in pair)
    return torch.nn.functional.pad(x, flat)

kernel_name = 'recurrent_scan__gqa_block_cached__swiglu_ffn__decode'

def setup_inputs():

    _w = (lambda a: (lambda t: t.to(torch.bfloat16) if t.is_floating_point() else t)(torch.as_tensor(a)))
    def _A_setup():
        B, Sq, D = 2, 1, 576
        Hq, Hkv, Sk, Dh = 32, 16, 32768, 128
        assert Hq % Hkv == 0, (Hq, Hkv)
        return {
            "x": _w((lambda *s: torch.randn(*s, dtype=torch.bfloat16) * 0.05)(B, Sq, D)),
            "k_cache": _w((lambda *s: torch.randn(*s, dtype=torch.bfloat16) * 1.6)(B, Hkv, Sk, Dh)),
            "v_cache": _w((lambda *s: torch.randn(*s, dtype=torch.bfloat16) * 0.2)(B, Hkv, Sk, Dh)),
            "wq": _w((lambda *s: torch.randn(*s, dtype=torch.bfloat16) * 1.6)(D, Hq * Dh) * (D ** -0.5)),
            "wo": _w((lambda *s: torch.randn(*s, dtype=torch.bfloat16) * 0.2)(Hq * Dh, D) * ((Hq * Dh) ** -0.5)),
        }
    _A_in = _A_setup()

    def _B_setup():
        B, S, D, F = 2, 1, 576, 4608
        return {
            "x": _w((lambda *s: torch.randn(*s, dtype=torch.bfloat16) * 0.05)(B, S, D)),
            "w_gate": _w((lambda *s: torch.randn(*s, dtype=torch.bfloat16) * 0.1)(D, F)),
            "w_up": _w((lambda *s: torch.randn(*s, dtype=torch.bfloat16) * 0.1)(D, F)),
            "w_down": _w((lambda *s: torch.randn(*s, dtype=torch.bfloat16) * 0.1)(F, D)),
        }
    _B_in = _B_setup()

    return {
        "A_x": _A_in["x"],
        "A_k_cache": _A_in["k_cache"],
        "A_v_cache": _A_in["v_cache"],
        "A_wq": _A_in["wq"],
        "A_wo": _A_in["wo"],
        "B_x": _B_in["x"],
        "B_w_gate": _B_in["w_gate"],
        "B_w_up": _B_in["w_up"],
        "B_w_down": _B_in["w_down"],
    }

def reference(A_x, A_k_cache, A_v_cache, A_wq, A_wo, B_x, B_w_gate, B_w_up, B_w_down):
    def _A_ref(x, k_cache, v_cache, wq, wo):
        B, Sq, D = x.shape
        Hq, Dh = 32, 128
        Hkv = k_cache.shape[1]
        rep = Hq // Hkv
        q = (lambda x, *d: x.permute(*d))((x @ wq).reshape(B, Sq, Hq, Dh), 0, 2, 1, 3)
        k = (lambda x, n, axis: torch.repeat_interleave(x, n, dim=axis))(k_cache, rep, axis=1)
        v = (lambda x, n, axis: torch.repeat_interleave(x, n, dim=axis))(v_cache, rep, axis=1)
        scores = torch.einsum("bhqd,bhkd->bhqk", q, k) * (Dh ** -0.5)
        p = _softmax(scores, axis=-1)
        o = torch.einsum("bhqk,bhkd->bhqd", p, v)
        return (lambda x, *d: x.permute(*d))(o, 0, 2, 1, 3).reshape(B, Sq, Hq * Dh) @ wo

    def _B_ref(x, w_gate, w_up, w_down):
        g = _silu(x @ w_gate)
        u = x @ w_up
        return (g * u) @ w_down

    x = A_x
    xn = _layernorm(x, axis=-1)
    s = _A_ref(xn, A_k_cache, A_v_cache, A_wq, A_wo)
    g = _silu(_B_ref(xn, B_w_gate, B_w_up, B_w_down))
    return x + s * g
```

```python
import sys, struct

KNAME = "recurrent_scan__gqa_block_cached__swiglu_ffn__decode_kernel"
HEADER = open("recurrent_scan__gqa_block_cached__swiglu_ffn__decode.s.ref").read().split("; Override launch")[0] if len(sys.argv) > 0 else ""

def f32(x):
    return "0x%08x" % struct.unpack("<I", struct.pack("<f", x))[0]

LOG2E = 1.4426950408889634
SCALE = 128 ** -0.5

QP = 0
OP = 0x40000
ML = 0x80000
SP = 0x90000
YP = 0x130000
TS = 0x300000
WS_USED = 0x400000
L_Q = 0
L_XB = 1024
L_XF = 4096
L_O = 9216
L_ML = 13312
LDS_BYTES = 16384

class Em:
    def __init__(self):
        self.L = []
    def __call__(self, s):
        for x in s.split("\n"):
            x = x.strip()
            if x:
                self.L.append("    " + x)
    def lab(self, s):
        self.L.append(s + ":")
    def c(self, s):
        self.L.append("    ; " + s)

def vr(a, n):
    return f"v[{a}:{a+n-1}]"
def sr(a, n):
    return f"s[{a}:{a+n-1}]"

DPP = "row_mask:0xf bank_mask:0xf"

def srd(e, d, base, nrec, add=None):
    if add is None:
        e(f"s_mov_b32 s{d}, s{base}")
        e(f"s_mov_b32 s{d+1}, s{base+1}")
    else:
        e(f"s_add_u32 s{d}, s{base}, {add}")
        e(f"s_addc_u32 s{d+1}, s{base+1}, 0")
    e(f"s_mov_b32 s{d+2}, {nrec}")
    e(f"s_mov_b32 s{d+3}, 0x20000")

def masks(e, m, t0, t1):
    e(f"v_and_b32 v{t0}, 1, v0")
    e(f"v_lshlrev_b32 v{t0}, 4, v{t0}")
    e(f"v_mov_b32 v{t1}, 0xffff")
    e(f"v_lshlrev_b32 v{t0}, v{t0}, v{t1}")
    e(f"v_bfe_u32 v{t1}, v0, 1, 2")
    for i in range(4):
        e(f"v_cmp_eq_u32 vcc, {i}, v{t1}")
        e("s_nop 1")
        e(f"v_cndmask_b32 v{m+i}, 0, v{t0}, vcc")

def allred_rows(e, op, x, t):
    e(f"v_mov_b32 v{t}, v{x}")
    e("s_nop 1")
    e(f"v_permlane16_swap_b32 v{x}, v{t}")
    e("s_nop 1")
    e(f"{op} v{x}, v{x}, v{t}")
    e(f"v_mov_b32 v{t}, v{x}")
    e("s_nop 1")
    e(f"v_permlane32_swap_b32 v{x}, v{t}")
    e("s_nop 1")
    e(f"{op} v{x}, v{x}, v{t}")

def dpp_step(e, op, x, ctrl):
    e("s_nop 1")
    e(f"{op}_dpp v{x}, v{x}, v{x} {ctrl} {DPP}")

def transpose_reduce4(e, o):
    e("s_nop 1")
    e(f"v_permlane16_swap_b32 v{o}, v{o+1}")
    e(f"v_permlane16_swap_b32 v{o+2}, v{o+3}")
    e("s_nop 1")
    e(f"v_add_f32 v{o}, v{o}, v{o+1}")
    e(f"v_add_f32 v{o+2}, v{o+2}, v{o+3}")
    e("s_nop 1")
    e(f"v_permlane32_swap_b32 v{o}, v{o+2}")
    e("s_nop 1")
    e(f"v_add_f32 v{o}, v{o}, v{o+2}")

def bf16r(e, dst, src):
    e(f"v_cvt_pk_bf16_f32 v{dst}, v{src}, v{src}")
    e(f"v_and_b32 v{dst}, 0xffff0000, v{dst}")

def x_loads(e, xs, vx, vt):
    e(f"v_and_b32 v{vt}, 7, v0")
    e(f"v_lshrrev_b32 v{vt+1}, 4, v0")
    e(f"v_lshl_or_b32 v{vt}, v{vt+1}, 3, v{vt}")
    e(f"v_mul_u32_u24 v{vt}, 36, v{vt}")
    e(f"v_bfe_u32 v{vt+1}, v0, 3, 1")
    e(f"v_mul_u32_u24 v{vt+1}, 1152, v{vt+1}")
    e(f"v_add_u32 v{vt}, v{vt}, v{vt+1}")
    e(f"buffer_load_dwordx4 {vr(vx,4)}, v{vt}, {sr(xs,4)}, 0 offen")
    e(f"buffer_load_dwordx4 {vr(vx+4,4)}, v{vt}, {sr(xs,4)}, 0 offen offset:16")
    e(f"buffer_load_dword v{vx+8}, v{vt}, {sr(xs,4)}, 0 offen offset:32")

def red32(e, x, t):
    dpp_step(e, "v_add_f32", x, "quad_perm:[1,0,3,2]")
    dpp_step(e, "v_add_f32", x, "quad_perm:[2,3,0,1]")
    dpp_step(e, "v_add_f32", x, "row_half_mirror")
    allred_rows(e, "v_add_f32", x, t)

def layernorm(e, vx, vf, t):
    for i in range(9):
        e(f"v_lshlrev_b32 v{vf+2*i}, 16, v{vx+i}")
        e(f"v_and_b32 v{vf+2*i+1}, 0xffff0000, v{vx+i}")
    e(f"v_add_f32 v{t}, v{vf}, v{vf+1}")
    e(f"v_add_f32 v{t+1}, v{vf+2}, v{vf+3}")
    for i in range(4, 18, 2):
        e(f"v_add_f32 v{t}, v{t}, v{vf+i}")
        e(f"v_add_f32 v{t+1}, v{t+1}, v{vf+i+1}")
    e(f"v_add_f32 v{t}, v{t}, v{t+1}")
    red32(e, t, t+1)
    e(f"v_mul_f32 v{t}, {f32(1.0/576)}, v{t}")
    e(f"v_sub_f32 v{t+1}, v{vf}, v{t}")
    e(f"v_mul_f32 v{t+2}, v{t+1}, v{t+1}")
    e(f"v_sub_f32 v{t+1}, v{vf+1}, v{t}")
    e(f"v_mul_f32 v{t+3}, v{t+1}, v{t+1}")
    for i in range(2, 18, 2):
        e(f"v_sub_f32 v{t+1}, v{vf+i}, v{t}")
        e(f"v_fmac_f32 v{t+2}, v{t+1}, v{t+1}")
        e(f"v_sub_f32 v{t+1}, v{vf+i+1}, v{t}")
        e(f"v_fmac_f32 v{t+3}, v{t+1}, v{t+1}")
    e(f"v_add_f32 v{t+2}, v{t+2}, v{t+3}")
    red32(e, t+2, t+1)
    e(f"v_mul_f32 v{t+2}, {f32(1.0/576)}, v{t+2}")
    bf16r(e, t+2, t+2)
    e(f"v_add_f32 v{t+2}, {f32(1e-5)}, v{t+2}")
    bf16r(e, t+2, t+2)
    e(f"v_sqrt_f32 v{t+2}, v{t+2}")
    e("s_nop 0")
    bf16r(e, t+2, t+2)
    e(f"v_rcp_f32 v{t+2}, v{t+2}")
    bf16r(e, t, t)
    for i in range(0, 18, 2):
        e(f"v_sub_f32 v{vf+i}, v{vf+i}, v{t}")
        e(f"v_sub_f32 v{vf+i+1}, v{vf+i+1}, v{t}")
        e(f"v_cvt_pk_bf16_f32 v{t+1}, v{vf+i}, v{vf+i+1}")
        e(f"v_lshlrev_b32 v{vf+i}, 16, v{t+1}")
        e(f"v_and_b32 v{vf+i+1}, 0xffff0000, v{t+1}")
        e(f"v_mul_f32 v{vf+i}, v{vf+i}, v{t+2}")
        e(f"v_mul_f32 v{vf+i+1}, v{vf+i+1}, v{t+2}")
        e(f"v_cvt_pk_bf16_f32 v{vx+i//2}, v{vf+i}, v{vf+i+1}")

def silu_bf16(e, x, t):
    e(f"v_mul_f32 v{t}, {f32(-LOG2E)}, v{x}")
    e(f"v_exp_f32 v{t}, v{t}")
    e("s_nop 0")
    e(f"v_add_f32 v{t}, 1.0, v{t}")
    e(f"v_rcp_f32 v{t}, v{t}")
    e("s_nop 0")
    e(f"v_mul_f32 v{x}, v{x}, v{t}")
    bf16r(e, x, x)

def gen(nbuf=4, ilv=False, pol="nt", wpol="nt", gpol="", stamps=False, bar1=True, spin=400000):
    e = Em()
    ns = [0]
    def stamp(role, k):
        if stamps:
            e(f"s_memrealtime {sr(60+2*k,2)}")
    def stamp_flush(nst, wsrd):
        if stamps:
            e("s_waitcnt lgkmcnt(0)")
            e("s_mul_i32 s58, s2, 6")
            e("s_add_u32 s58, s58, s3")
            e("s_lshl_b32 s58, s58, 7")
            e(f"s_add_u32 s58, s58, {TS}")
            e("s_mov_b64 exec, 1")
            e("v_mov_b32 v1, 0")
            for k in range(nst):
                e(f"v_mov_b32 v2, s{60+2*k}")
                e(f"v_mov_b32 v3, s{61+2*k}")
                e(f"buffer_store_dwordx2 v[2:3], v1, {sr(wsrd,4)}, s58 offen offset:{8*k}")
            e("s_waitcnt vmcnt(0)")

    e("s_cmp_ge_u32 s2, 256")
    e("s_cbranch_scc1 L_end")
    stamp("all", 0)
    e("s_load_dwordx16 s[8:23], s[0:1], 0")
    e("s_load_dwordx8 s[24:31], s[0:1], 64")
    e("v_lshrrev_b32 v1, 6, v0")
    e("v_and_b32 v0, 63, v0")
    e("s_lshr_b32 s4, s2, 3")
    e("v_readfirstlane_b32 s3, v1")
    e("s_and_b32 s5, s2, 7")
    e("s_lshr_b32 s6, s4, 4")
    e("s_and_b32 s7, s4, 15")
    e("s_cmp_eq_u32 s3, 0")
    e("s_cbranch_scc1 L_hq")
    e("s_cmp_eq_u32 s3, 1")
    e("s_cbranch_scc1 L_hf")

    VK = 1; VV = 2
    VM = 4
    VQ = 8
    VS = 24
    VO = 28
    VMX = 32; VL = 33
    VT = 34
    VB = 48
    VBUF = 64
    kreg = lambda b, u: VBUF + b*32 + u*4
    vreg = lambda b, u: VBUF + b*32 + 16 + u*4
    e.c("streamers")
    e(f"v_and_b32 v3, 15, v0")
    e(f"v_lshrrev_b32 v{VT}, 4, v0")
    e(f"v_lshlrev_b32 v{VK}, 8, v3")
    e(f"v_lshl_or_b32 v{VK}, v{VT}, 4, v{VK}")
    e(f"v_lshlrev_b32 v{VV}, 4, v3")
    e(f"v_lshl_or_b32 v{VV}, v{VT}, 10, v{VV}")
    e("s_sub_u32 s42, s3, 2")
    e("s_lshl_b32 s40, s4, 23")
    if ilv:
        e("s_lshl_b32 s41, s5, 14"); tstride = 131072
    else:
        e("s_lshl_b32 s41, s5, 20"); tstride = 16384
    e("s_lshl_b32 s43, s42, 12")
    e("s_add_u32 s41, s41, s43")
    e("s_waitcnt lgkmcnt(0)")
    srd(e, 32, 10, 0x800000, add="s40")
    srd(e, 36, 12, 0x800000, add="s40")
    if stamps: srd(e, 44, 30, WS_USED)
    if bar1: e("s_barrier")
    def kloads(b):
        for u in range(4):
            e(f"buffer_load_dwordx4 {vr(kreg(b,u),4)}, v{VK}, s[32:35], s41 offen offset:{u*64} {pol}")
    def vloads(b):
        for u in range(4):
            e(f"buffer_load_dwordx4 {vr(vreg(b,u),4)}, v{VV}, s[36:39], s41 offen offset:{u*256} {pol}")
        e(f"s_add_u32 s41, s41, {tstride}")
    for b in range(nbuf):
        kloads(b); vloads(b)
    masks(e, VM, VT, VT+1)
    e(f"v_mov_b32 v{VMX}, {f32(-3.0e38)}")
    e(f"v_mov_b32 v{VL}, 0")
    for i in range(4):
        e(f"v_mov_b32 v{VO+i}, 0")
    e(f"v_bfe_u32 v{VT}, v0, 3, 1")
    e(f"v_lshlrev_b32 v{VT}, 8, v{VT}")
    e(f"v_lshrrev_b32 v{VT+1}, 4, v0")
    e(f"v_lshl_or_b32 v{VT}, v{VT+1}, 4, v{VT}")
    e(f"s_mov_b32 s48, {f32(LOG2E)}")
    stamp("s", 1)
    e("s_barrier")
    for u in range(4):
        e(f"ds_read_b128 {vr(VQ+4*u,4)}, v{VT} offset:{L_Q+u*64}")
    stamp("s", 2)
    e("s_waitcnt lgkmcnt(0)")

    def tile(b, reissue, cntk, cntv):
        e(f"s_waitcnt vmcnt({cntk})")
        for u in range(4):
            c = "0" if u == 0 else vr(VS, 4)
            e(f"v_mfma_f32_16x16x32_bf16 {vr(VS,4)}, {vr(kreg(b,u),4)}, {vr(VQ+4*u,4)}, {c}")
        if reissue:
            kloads(b)
            e("s_nop 3")
        else:
            e("s_nop 7")
        T = VT
        e(f"v_cvt_pk_bf16_f32 v{T}, v{VS}, v{VS+1}")
        e(f"v_cvt_pk_bf16_f32 v{T+1}, v{VS+2}, v{VS+3}")
        e(f"v_lshlrev_b32 v{T+2}, 16, v{T}")
        e(f"v_and_b32 v{T+3}, 0xffff0000, v{T}")
        e(f"v_lshlrev_b32 v{T+4}, 16, v{T+1}")
        e(f"v_and_b32 v{T+5}, 0xffff0000, v{T+1}")
        for i in range(4):
            e(f"v_mul_f32 v{T+2+i}, {f32(SCALE)}, v{T+2+i}")
        e(f"v_cvt_pk_bf16_f32 v{T}, v{T+2}, v{T+3}")
        e(f"v_cvt_pk_bf16_f32 v{T+1}, v{T+4}, v{T+5}")
        e(f"v_lshlrev_b32 v{T+2}, 16, v{T}")
        e(f"v_and_b32 v{T+3}, 0xffff0000, v{T}")
        e(f"v_lshlrev_b32 v{T+4}, 16, v{T+1}")
        e(f"v_and_b32 v{T+5}, 0xffff0000, v{T+1}")
        e(f"v_max3_f32 v{T+6}, v{T+2}, v{T+3}, v{T+4}")
        e(f"v_max3_f32 v{T+6}, v{T+6}, v{T+5}, v{VMX}")
        allred_rows(e, "v_max_f32", T+6, T+7)
        e(f"v_sub_f32 v{T+7}, v{VMX}, v{T+6}")
        e(f"v_mul_f32 v{T+8}, s48, v{T+6}")
        e(f"v_mul_f32 v{T+7}, s48, v{T+7}")
        e(f"v_mov_b32 v{VMX}, v{T+6}")
        e(f"v_exp_f32 v{T+7}, v{T+7}")
        for i in range(4):
            e(f"v_fma_f32 v{T+2+i}, v{T+2+i}, s48, -v{T+8}")
        for i in range(4):
            e(f"v_exp_f32 v{T+2+i}, v{T+2+i}")
        for i in range(4):
            e(f"v_mul_f32 v{VO+i}, v{VO+i}, v{T+7}")
        e(f"v_fma_f32 v{VL}, v{VL}, v{T+7}, v{T+2}")
        e(f"v_add_f32 v{T+8}, v{T+3}, v{T+4}")
        e(f"v_add_f32 v{VL}, v{VL}, v{T+5}")
        e(f"v_add_f32 v{VL}, v{VL}, v{T+8}")
        for u in range(4):
            e(f"v_cvt_pk_bf16_f32 v{T+9+u}, v{T+2+u}, v{T+2+u}")
        for u in range(4):
            for i in range(4):
                e(f"v_and_b32 v{VB+4*u+i}, v{T+9+u}, v{VM+i}")
        e(f"s_waitcnt vmcnt({cntv})")
        e("s_nop 0")
        for u in range(4):
            e(f"v_mfma_f32_16x16x32_bf16 {vr(VO,4)}, {vr(vreg(b,u),4)}, {vr(VB+4*u,4)}, {vr(VO,4)}")
        if reissue:
            vloads(b)

    NT = 64
    assert NT % nbuf == 0
    e(f"s_mov_b32 s49, {NT//nbuf - 1}")
    e.lab("L_sloop")
    full = (2*nbuf - 1) * 4
    for b in range(nbuf):
        tile(b, True, full, full)
    e("s_sub_u32 s49, s49, 1")
    e("s_cmp_lg_u32 s49, 0")
    e("s_cbranch_scc1 L_sloop")
    for b in range(nbuf):
        rem = (nbuf - 1 - b) * 8
        tile(b, False, rem + 4, rem)
    stamp("s", 3)
    allred_rows(e, "v_add_f32", VL, VT)
    e(f"v_lshlrev_b32 v{VT}, 4, v0")
    e(f"s_lshl_b32 s43, s42, 10")
    e(f"v_add_u32 v{VT}, s43, v{VT}")
    e(f"v_lshlrev_b32 v{VT+1}, 3, v0")
    e(f"s_lshl_b32 s43, s42, 9")
    e(f"v_add_u32 v{VT+1}, s43, v{VT+1}")
    e(f"ds_write_b128 v{VT}, {vr(VO,4)} offset:{L_O}")
    e(f"ds_write_b64 v{VT+1}, {vr(VMX,2)} offset:{L_ML}")
    e("s_waitcnt lgkmcnt(0)")
    e("s_barrier")
    stamp_flush(4, 44)
    e("s_endpgm")

    e.lab("L_hq")
    e("s_setprio 3")
    HM = 4
    HX = 8
    HT = 18
    HF = 32
    HD = 52
    HA = 56
    HW = 64
    HB = 136
    e(f"v_lshrrev_b32 v{HT}, 4, v0")
    e(f"v_and_b32 v{HT+1}, 15, v0")
    e(f"v_and_b32 v{HT+2}, 7, v0")
    e(f"v_bfe_u32 v{HT+3}, v0, 3, 1")
    e(f"s_mul_i32 s40, s5, {72*8192}")
    e("s_lshl_b32 s41, s7, 1")
    e("s_add_u32 s41, s41, s6")
    e("s_lshl_b32 s41, s41, 8")
    e("s_add_u32 s40, s40, s41")
    e(f"v_mul_u32_u24 v{HA}, {18*8192}, v{HT}")
    e(f"v_lshl_add_u32 v{HA}, v{HT+1}, 4, v{HA}")
    e(f"v_add_u32 v{HA}, s40, v{HA}")
    e(f"v_lshl_add_u32 v{HA+1}, v{HT+3}, 2, v{HT}")
    e(f"v_lshlrev_b32 v{HA+1}, 10, v{HA+1}")
    e(f"v_lshl_add_u32 v{HA+1}, v{HT+2}, 4, v{HA+1}")
    e("s_lshl_b32 s40, s4, 13")
    e("s_lshl_b32 s41, s5, 7")
    e("s_add_u32 s40, s40, s41")
    e(f"s_add_u32 s40, s40, {OP}")
    e(f"v_add_u32 v{HA+1}, s40, v{HA+1}")
    e("s_lshl_b32 s40, s4, 7")
    e("s_lshl_b32 s41, s5, 3")
    e("s_add_u32 s40, s40, s41")
    e(f"s_add_u32 s40, s40, {ML}")
    e(f"v_lshlrev_b32 v{HA+2}, 6, v{HT+3}")
    e(f"v_add_u32 v{HA+2}, s40, v{HA+2}")
    e(f"s_mul_i32 s40, s6, {18*16384}")
    e("s_lshl_b32 s41, s7, 3")
    e("s_add_u32 s41, s41, s5")
    e("s_lshl_b32 s41, s41, 7")
    e("s_add_u32 s40, s40, s41")
    e(f"s_add_u32 s40, s40, {SP}")
    e(f"v_lshlrev_b32 v{HA+3}, 14, v{HT}")
    e(f"v_lshl_add_u32 v{HA+3}, v{HT+2}, 4, v{HA+3}")
    e(f"v_add_u32 v{HA+3}, s40, v{HA+3}")
    e("s_lshl_b32 s40, s7, 14")
    e("s_lshl_b32 s41, s6, 12")
    e("s_add_u32 s40, s40, s41")
    e("s_lshl_b32 s41, s5, 9")
    e("s_add_u32 s40, s40, s41")
    e(f"v_lshl_add_u32 v{HA+4}, v{HT}, 3, v{HT+2}")
    e(f"v_lshlrev_b32 v{HA+4}, 4, v{HA+4}")
    e(f"v_lshl_add_u32 v{HA+4}, v{HT+3}, 13, v{HA+4}")
    e(f"v_add_u32 v{HA+4}, s40, v{HA+4}")
    for i in range(4):
        e(f"v_mov_b32 v{HD+i}, -1")
    e("s_waitcnt lgkmcnt(0)")
    srd(e, 32, 8, 2304)
    srd(e, 36, 14, 576*8192)
    srd(e, 44, 30, WS_USED)
    srd(e, 48, 28, 256)
    srd(e, 52, 16, 4096*1152)
    x_loads(e, 32, HX, HT+4)
    for u in range(18):
        e(f"s_mov_b32 s40, {u*8192}")
        e(f"buffer_load_dwordx4 {vr(HW+4*u,4)}, v{HA}, s[36:39], s40 offen {wpol}")
    e(f"buffer_store_dwordx4 {vr(HD,4)}, v{HA+1}, s[44:47], 0 offen sc1")
    e("s_mov_b64 exec, 0x101")
    e(f"buffer_store_dwordx2 {vr(HD,2)}, v{HA+2}, s[44:47], 0 offen sc1")
    e("s_mov_b32 s56, 0x00ff00ff")
    e("s_mov_b32 s57, 0x00ff00ff")
    e("s_mov_b64 exec, s[56:57]")
    for seg in range(5):
        if seg == 4:
            e("s_mov_b64 exec, 0x00ff00ff")
        e(f"s_mov_b32 s40, {seg*65536}")
        e(f"buffer_store_dwordx4 {vr(HD,4)}, v{HA+3}, s[44:47], s40 offen sc1")
    e("s_mov_b64 exec, -1")
    if bar1: e("s_barrier")
    masks(e, HM, HT+6, HT+7)
    e("s_waitcnt vmcnt(25)")
    stamp("q", 1)
    layernorm(e, HX, HF, HT+8)
    for i in range(9):
        e(f"ds_write_b32 v{HT+4}, v{HX+i} offset:{L_XB+4*i}")
    e(f"s_mul_i32 s40, s5, 144")
    e(f"v_mul_u32_u24 v{HT+6}, 36, v{HT}")
    e(f"v_mul_u32_u24 v{HT+7}, 1152, v{HT+3}")
    e(f"v_add3_u32 v{HT+6}, v{HT+6}, v{HT+7}, s40")
    e("s_waitcnt lgkmcnt(0)")
    for i in range(9):
        e(f"ds_read_b32 v{HX+i}, v{HT+6} offset:{L_XB+4*i}")
    e("s_mov_b32 s40, 0x01000100")
    e("s_mov_b32 s41, 0x03020302")
    e("s_waitcnt lgkmcnt(0)")
    for u in range(18):
        e(f"v_perm_b32 v{HT+8}, v{HX+u//2}, v{HX+u//2}, s{40+(u&1)}")
        for i in range(4):
            e(f"v_and_b32 v{HB+4*u+i}, v{HT+8}, v{HM+i}")
    stamp("q", 2)
    for u in range(18):
        e(f"s_waitcnt vmcnt({7 + 17 - u})")
        c = "0" if u == 0 else vr(HD, 4)
        e(f"v_mfma_f32_16x16x32_bf16 {vr(HD,4)}, {vr(HW+4*u,4)}, {vr(HB+4*u,4)}, {c}")
    e("s_lshl_b32 s40, s7, 4")
    e("s_lshl_b32 s41, s6, 3")
    e("s_add_u32 s41, s41, s5")
    e("s_add_u32 s41, s41, s40")
    e(f"v_mov_b32 v{HT+8}, 1")
    e("s_nop 4")
    e(f"buffer_store_dwordx4 {vr(HD,4)}, v{HA+4}, s[44:47], 0 offen sc1")
    stamp("q", 3)
    e("s_waitcnt vmcnt(0)")
    e("s_mov_b64 exec, 1")
    e(f"buffer_store_byte v{HT+8}, off, s[48:51], s41 sc1")
    stamp("q", 4)
    e(f"s_mov_b32 s42, {spin}")
    e.lab("L_qpoll")
    e(f"buffer_load_dwordx4 {vr(HT+8,4)}, off, s[48:51], s40 sc1")
    e("s_waitcnt vmcnt(0)")
    e(f"v_and_b32 v{HT+8}, v{HT+8}, v{HT+9}")
    e(f"v_and_b32 v{HT+10}, v{HT+10}, v{HT+11}")
    e(f"v_and_b32 v{HT+8}, v{HT+8}, v{HT+10}")
    e(f"v_and_b32 v{HT+8}, 0x01010101, v{HT+8}")
    e("s_nop 0")
    e(f"v_readfirstlane_b32 s43, v{HT+8}")
    e("s_cmp_eq_u32 s43, 0x01010101")
    e("s_cbranch_scc1 L_qready")
    e("s_sub_u32 s42, s42, 1")
    e("s_cmp_lg_u32 s42, 0")
    e("s_cbranch_scc1 L_qpoll")
    e.lab("L_qready")
    e("s_mov_b64 exec, -1")
    stamp("q", 5)
    e("s_lshl_b32 s40, s7, 14")
    e("s_lshl_b32 s41, s6, 13")
    e("s_add_u32 s40, s40, s41")
    e(f"v_and_b32 v{HT+8}, 31, v0")
    e(f"v_lshlrev_b32 v{HT+8}, 4, v{HT+8}")
    e(f"v_lshrrev_b32 v{HT+9}, 5, v0")
    e(f"v_lshl_add_u32 v{HT+8}, v{HT+9}, 12, v{HT+8}")
    for t in range(8):
        e(f"buffer_load_dwordx4 {vr(HW+4*t,4)}, v{HT+8}, s[44:47], s40 offen offset:{t*512} sc1")
    e(f"v_bfe_u32 v{HT+10}, v0, 3, 2")
    e(f"v_lshl_add_u32 v{HT+10}, v{HT+10}, 5, v{HT+2}")
    e(f"v_lshlrev_b32 v{HT+10}, 1, v{HT+10}")
    e(f"v_lshl_add_u32 v{HT+10}, v{HT+9}, 8, v{HT+10}")
    for t in range(1, 8):
        e(f"s_waitcnt vmcnt({7-t})")
        for i in range(4):
            e(f"v_add_f32 v{HW+i}, v{HW+i}, v{HW+4*t+i}")
    e(f"v_cvt_pk_bf16_f32 v{HW}, v{HW}, v{HW+1}")
    e(f"v_cvt_pk_bf16_f32 v{HW+2}, v{HW+2}, v{HW+3}")
    e(f"ds_write_b16 v{HT+10}, v{HW} offset:{L_Q}")
    e(f"ds_write_b16_d16_hi v{HT+10}, v{HW} offset:{L_Q+16}")
    e(f"ds_write_b16 v{HT+10}, v{HW+2} offset:{L_Q+32}")
    e(f"ds_write_b16_d16_hi v{HT+10}, v{HW+2} offset:{L_Q+48}")
    e("s_waitcnt lgkmcnt(0)")
    stamp("q", 6)
    e("s_barrier")
    e("s_setprio 0")
    WO = 64
    e("s_lshl_b32 s40, s7, 8")
    e("s_lshl_b32 s41, s5, 5")
    e("s_add_u32 s40, s40, s41")
    e("s_mul_i32 s40, s40, 1152")
    e(f"v_mul_u32_u24 v{HA}, {8*1152}, v{HT}")
    e(f"v_lshl_add_u32 v{HA}, v{HT+1}, 4, v{HA}")
    e(f"v_add_u32 v{HA}, s40, v{HA}")
    for u in range(8):
        e(f"s_mov_b32 s40, {u*1152}")
        for seg in range(5):
            e(f"buffer_load_dwordx4 {vr(WO+(u*5+seg)*4,4)}, v{HA}, s[52:55], s40 offen offset:{seg*256} {gpol}")
    e("s_lshl_b32 s40, s4, 13")
    e("s_lshl_b32 s41, s5, 10")
    e("s_add_u32 s40, s40, s41")
    e(f"s_add_u32 s40, s40, {OP}")
    e(f"v_lshlrev_b32 v{HA+5}, 4, v0")
    e(f"v_add_u32 v{HA+5}, s40, v{HA+5}")
    e("s_lshl_b32 s40, s4, 7")
    e("s_lshr_b32 s41, s5, 2")
    e("s_lshl_b32 s41, s41, 6")
    e("s_add_u32 s40, s40, s41")
    e(f"s_add_u32 s40, s40, {ML}")
    e(f"v_and_b32 v{HA+6}, 0x38, v0")
    e(f"v_add_u32 v{HA+6}, s40, v{HA+6}")
    e(f"v_lshlrev_b32 v{HT+4}, 4, v0")
    e(f"v_lshlrev_b32 v{HT+5}, 3, v0")
    e(f"s_mov_b32 s43, {f32(LOG2E)}")
    e("s_waitcnt vmcnt(0)")
    e("s_setprio 3")
    e("s_barrier")
    stamp("q", 7)
    TO = 224
    TML = 240
    for w in range(4):
        e(f"ds_read_b64 {vr(TML+2*w,2)}, v{HT+5} offset:{L_ML+512*w}")
    for w in range(4):
        e(f"ds_read_b128 {vr(TO+4*w,4)}, v{HT+4} offset:{L_O+1024*w}")
    e("s_waitcnt lgkmcnt(4)")
    X = 32
    e(f"v_max3_f32 v{X}, v{TML}, v{TML+2}, v{TML+4}")
    e(f"v_max_f32 v{X}, v{X}, v{TML+6}")
    for w in range(4):
        e(f"v_sub_f32 v{X+2+w}, v{TML+2*w}, v{X}")
    for w in range(4):
        e(f"v_mul_f32 v{X+2+w}, s43, v{X+2+w}")
    for w in range(4):
        e(f"v_exp_f32 v{X+2+w}, v{X+2+w}")
    e("s_nop 0")
    e(f"v_mul_f32 v{X+1}, v{X+2}, v{TML+1}")
    for w in range(1, 4):
        e(f"v_fmac_f32 v{X+1}, v{X+2+w}, v{TML+2*w+1}")
    e("s_waitcnt lgkmcnt(0)")
    for i in range(4):
        e(f"v_mul_f32 v{HD+i}, v{X+2}, v{TO+i}")
    for w in range(1, 4):
        for i in range(4):
            e(f"v_fmac_f32 v{HD+i}, v{X+2+w}, v{TO+4*w+i}")
    for i in range(4):
        e(f"v_min_u32 v{HD+i}, -2, v{HD+i}")
    e(f"v_min_u32 v{X}, -2, v{X}")
    e(f"v_min_u32 v{X+1}, -2, v{X+1}")
    e(f"buffer_store_dwordx4 {vr(HD,4)}, v{HA+1}, s[44:47], 0 offen sc1")
    e("s_mov_b64 exec, 0x101")
    e(f"buffer_store_dwordx2 {vr(X,2)}, v{HA+2}, s[44:47], 0 offen sc1")
    e("s_mov_b64 exec, -1")
    stamp("q", 8)
    e(f"s_mov_b32 s42, {spin}")
    e.lab("L_opoll")
    e(f"buffer_load_dwordx4 {vr(TO,4)}, v{HA+5}, s[44:47], 0 offen sc1")
    e(f"buffer_load_dwordx2 {vr(TML,2)}, v{HA+6}, s[44:47], 0 offen sc1")
    e("s_waitcnt vmcnt(0)")
    e(f"v_max3_u32 v{X+8}, v{TO}, v{TO+1}, v{TO+2}")
    e(f"v_max3_u32 v{X+8}, v{X+8}, v{TO+3}, v{TML}")
    e(f"v_max_u32 v{X+8}, v{X+8}, v{TML+1}")
    e(f"v_cmp_eq_u32 vcc, -1, v{X+8}")
    e("s_cbranch_vccz L_oready")
    e("s_sub_u32 s42, s42, 1")
    e("s_cmp_lg_u32 s42, 0")
    e("s_cbranch_scc1 L_opoll")
    e.lab("L_oready")
    stamp("q", 9)
    e(f"v_mov_b32 v{X}, v{TML}")
    dpp_step(e, "v_max_f32", X, "row_ror:8")
    allred_rows(e, "v_max_f32", X, X+1)
    e(f"v_sub_f32 v{X+1}, v{TML}, v{X}")
    e(f"v_mul_f32 v{X+1}, s43, v{X+1}")
    e(f"v_exp_f32 v{X+1}, v{X+1}")
    e("s_nop 0")
    e(f"v_mul_f32 v{X+2}, v{X+1}, v{TML+1}")
    for i in range(4):
        e(f"v_mul_f32 v{TO+i}, v{X+1}, v{TO+i}")
    e(f"v_add_f32_dpp v{X+2}, v{X+2}, v{X+2} row_ror:8 {DPP}")
    for i in range(4):
        e(f"v_add_f32_dpp v{TO+i}, v{TO+i}, v{TO+i} row_ror:8 {DPP}")
    allred_rows(e, "v_add_f32", X+2, X+3)
    transpose_reduce4(e, TO)
    e(f"v_rcp_f32 v{X+2}, v{X+2}")
    e("s_nop 0")
    e(f"v_mul_f32 v{TO}, v{TO}, v{X+2}")
    e(f"v_cvt_pk_bf16_f32 v{TO}, v{TO}, v{TO}")
    e("s_nop 1")
    BB = 8
    ACC = 32
    for u in range(8):
        bs = 228 + 4*(u & 1)
        for i in range(4):
            e(f"v_and_b32_dpp v{bs+i}, v{TO}, v{HM+i} row_newbcast:{u} {DPP}")
        e("s_nop 1")
        for seg in range(5):
            c = "0" if u == 0 else vr(ACC+4*seg, 4)
            e(f"v_mfma_f32_16x16x32_bf16 {vr(ACC+4*seg,4)}, {vr(WO+(u*5+seg)*4,4)}, {vr(bs,4)}, {c}")
    e("s_nop 3")
    e("s_mov_b64 exec, s[56:57]")
    for seg in range(5):
        if seg == 4:
            e("s_mov_b64 exec, 0x00ff00ff")
            e("s_nop 3")
        for i in range(4):
            e(f"v_min_u32 v{ACC+4*seg+i}, -2, v{ACC+4*seg+i}")
        e(f"s_mov_b32 s40, {seg*65536}")
        e(f"buffer_store_dwordx4 {vr(ACC+4*seg,4)}, v{HA+3}, s[44:47], s40 offen sc1")
    stamp("q", 10)
    stamp_flush(11, 44)
    e("s_endpgm")

    e.lab("L_hf")
    FM = 4; FX = 8; FT = 18; FF = 32
    FA = 52
    FW = 64
    FACC = 208
    FXN = 232
    FU = 248
    e(f"v_lshrrev_b32 v{FT}, 4, v0")
    e(f"v_and_b32 v{FT+1}, 15, v0")
    e(f"v_and_b32 v{FT+2}, 7, v0")
    e(f"v_bfe_u32 v{FT+3}, v0, 3, 1")
    e("s_lshl_b32 s42, s5, 5")
    e("s_add_u32 s42, s42, s4")
    e("s_mul_i32 s40, s42, 36")
    e(f"v_mul_u32_u24 v{FA}, 9216, v{FT+1}")
    e(f"v_mul_u32_u24 v{FA+1}, 12, v{FT}")
    e(f"v_add3_u32 v{FA}, v{FA}, v{FA+1}, s40")
    e(f"v_mov_b32 v{FA+2}, 0x7f000000")
    e(f"v_cmp_eq_u32 vcc, 3, v{FT}")
    e("s_nop 1")
    e(f"v_cndmask_b32 v{FA}, v{FA}, v{FA+2}, vcc")
    e(f"s_mul_i32 s40, s42, {18*1152}")
    e(f"v_mul_u32_u24 v{FA+1}, {6*1152}, v{FT}")
    e(f"v_lshl_add_u32 v{FA+1}, v{FT+1}, 4, v{FA+1}")
    e(f"v_add_u32 v{FA+1}, s40, v{FA+1}")
    e(f"v_cndmask_b32 v{FA+1}, v{FA+1}, v{FA+2}, vcc")
    e("s_waitcnt lgkmcnt(0)")
    srd(e, 32, 8, 2304)
    srd(e, 36, 20, 576*9216)
    srd(e, 52, 22, 576*9216)
    srd(e, 44, 30, WS_USED)
    srd(e, 48, 28, 256)
    srd(e, 84, 24, 4608*1152)
    srd(e, 88, 26, 2304)
    x_loads(e, 32, FX, FT+4)
    if bar1: e("s_barrier")
    for t in range(36):
        e(f"s_mov_b32 s40, {t*16*9216}")
        e(f"buffer_load_dwordx3 {vr(FW+4*t,3)}, v{FA}, s[36:39], s40 offen {gpol}")
    masks(e, FM, FT+6, FT+7)
    e("s_waitcnt vmcnt(36)")
    layernorm(e, FX, FF, FT+8)
    e(f"v_and_b32 v{FT+6}, 7, v0")
    e(f"v_lshl_or_b32 v{FT+6}, v{FT}, 3, v{FT+6}")
    e(f"v_mul_u32_u24 v{FT+6}, 144, v{FT+6}")
    e(f"v_lshl_add_u32 v{FT+6}, v{FT+3}, 2, v{FT+6}")
    for i in range(9):
        e(f"v_lshlrev_b32 v{FF+2*i}, 16, v{FX+i}")
        e(f"v_and_b32 v{FF+2*i+1}, 0xffff0000, v{FX+i}")
    for i in range(18):
        e(f"ds_write_b32 v{FT+6}, v{FF+i} offset:{L_XF+8*i}")
    e(f"v_lshlrev_b32 v{FT+7}, 3, v{FT+1}")
    for i in range(24):
        e(f"v_mov_b32 v{FACC+i}, 0")
    e("s_waitcnt lgkmcnt(0)")
    stamp("f", 1)
    e("s_barrier")
    def gu_phase(m, nxt):
        acc = FACC + 12*m
        for t0 in range(0, 36, 6):
            for t in range(t0, t0+6):
                e(f"ds_read_b64 {vr(FXN+2*(t-t0),2)}, v{FT+7} offset:{L_XF+128*t}")
            for t in range(t0, t0+6):
                e(f"s_waitcnt vmcnt({nxt(t, True)}) lgkmcnt({5-(t-t0)})")
                w = FW + 4*t
                for k in range(3):
                    e(f"v_lshlrev_b32 v{FU+2*k}, 16, v{w+k}")
                    e(f"v_and_b32 v{FU+2*k+1}, 0xffff0000, v{w+k}")
                nxt(t, False)
                xp = vr(FXN+2*(t-t0), 2)
                for k in range(3):
                    e(f"v_pk_fma_f32 {vr(acc+4*k,2)}, {vr(FU+2*k,2)}, {xp}, {vr(acc+4*k,2)} op_sel_hi:[0,1,1]")
                    e(f"v_pk_fma_f32 {vr(acc+4*k+2,2)}, {vr(FU+2*k,2)}, {xp}, {vr(acc+4*k+2,2)} op_sel:[1,0,0] op_sel_hi:[1,1,1]")
    def nxt_up(t, count):
        if count: return 35
        e(f"s_mov_b32 s40, {t*16*9216}")
        e(f"buffer_load_dwordx3 {vr(FW+4*t,3)}, v{FA}, s[52:55], s40 offen {gpol}")
    def nxt_down(t, count):
        if count:
            return 35 if t <= 30 else 35 - (t - 30)
        if t < 30:
            u, seg = divmod(t, 5)
            e(f"s_mov_b32 s40, {u*1152}")
            e(f"buffer_load_dwordx4 {vr(FW+4*t,4)}, v{FA+1}, s[84:87], s40 offen offset:{seg*256} {wpol}")
    gu_phase(0, nxt_up)
    gu_phase(1, nxt_down)
    for ctrl in ("row_ror:8", "row_ror:4", "row_ror:2", "row_ror:1"):
        e("s_nop 1")
        for i in range(24):
            e(f"v_add_f32_dpp v{FACC+i}, v{FACC+i}, v{FACC+i} {ctrl} {DPP}")
    e(f"v_cmp_eq_u32 vcc, 1, v{FT+3}")
    e("s_nop 1")
    for cidx in range(12):
        e(f"v_cndmask_b32 v{FF+cidx}, v{FACC+2*cidx}, v{FACC+2*cidx+1}, vcc")
    for cidx in range(12):
        bf16r(e, FF+cidx, FF+cidx)
    for cidx in range(6):
        silu_bf16(e, FF+cidx, FT+8)
        e(f"v_mul_f32 v{FF+cidx}, v{FF+cidx}, v{FF+6+cidx}")
        e(f"v_cvt_pk_bf16_f32 v{FF+cidx}, v{FF+cidx}, v{FF+cidx}")
    FB = 184
    for u in range(6):
        for i in range(4):
            e(f"v_and_b32 v{FB+4*u+i}, v{FF+u}, v{FM+i}")
    e(f"v_mul_u32_u24 v{FA+3}, {18*32768}, v{FT+3}")
    e(f"v_lshl_add_u32 v{FA+3}, v{FT}, 15, v{FA+3}")
    e(f"v_lshl_add_u32 v{FA+3}, v{FT+2}, 4, v{FA+3}")
    e("s_waitcnt vmcnt(0)")
    for u in range(6):
        for seg in range(5):
            c = "0" if u == 0 else vr(FACC+4*seg, 4)
            e(f"v_mfma_f32_16x16x32_bf16 {vr(FACC+4*seg,4)}, {vr(FW+(u*5+seg)*4,4)}, {vr(FB+4*u,4)}, {c}")
    e("s_lshl_b32 s41, s2, 7")
    e(f"s_add_u32 s41, s41, {YP}")
    e("s_nop 7")
    for seg in range(5):
        if seg == 4:
            e("s_mov_b32 exec_hi, 0")
        e(f"s_add_u32 s40, s41, {seg*131072}")
        e(f"buffer_store_dwordx4 {vr(FACC+4*seg,4)}, v{FA+3}, s[44:47], s40 offen sc1")
    e("s_lshl_b32 s40, s7, 4")
    e("s_lshl_b32 s41, s6, 3")
    e("s_add_u32 s41, s41, s5")
    e("s_add_u32 s41, s41, s40")
    e("s_mov_b64 exec, 1")
    e(f"v_mov_b32 v{FT+8}, 3")
    e("s_waitcnt vmcnt(0)")
    e(f"buffer_store_byte v{FT+8}, off, s[48:51], s41 sc1")
    e("s_mov_b64 exec, -1")
    stamp("f", 2)
    e("s_cmp_lt_u32 s2, 72")
    e("s_cbranch_scc1 L_final")
    stamp_flush(3, 44)
    e("s_endpgm")
    e.lab("L_final")
    e("s_cmp_ge_u32 s2, 36")
    e("s_cselect_b32 s42, 1, 0")
    e("s_mul_i32 s40, s42, 36")
    e("s_sub_u32 s40, s2, s40")
    e("s_and_b32 s43, s40, 1")
    e("s_lshr_b32 s56, s40, 1")
    e(f"v_lshrrev_b32 v{FA}, 2, v0")
    e(f"v_lshlrev_b32 v{FA}, 7, v{FA}")
    e(f"v_and_b32 v{FA+1}, 3, v0")
    e(f"v_lshl_add_u32 v{FA}, v{FA+1}, 4, v{FA}")
    e("s_lshl_b32 s40, s43, 6")
    e(f"v_add_u32 v{FA}, s40, v{FA}")
    e("s_mul_i32 s40, s42, 576")
    e("s_lshl_b32 s41, s56, 5")
    e("s_add_u32 s40, s40, s41")
    e("s_lshl_b32 s41, s43, 2")
    e("s_add_u32 s40, s40, s41")
    e(f"v_lshl_add_u32 v{FA+2}, v{FT}, 3, v{FA+1}")
    e(f"v_add_u32 v{FA+2}, s40, v{FA+2}")
    e(f"v_lshlrev_b32 v{FA+2}, 1, v{FA+2}")
    e(f"buffer_load_ushort v{FF+1}, v{FA+2}, s[32:35], 0 offen")
    e(f"v_lshlrev_b32 v{FA+4}, 2, v0")
    e(f"s_mov_b32 s57, {spin}")
    e.lab("L_ypoll")
    e(f"buffer_load_dword v{FT+8}, v{FA+4}, s[48:51], 0 offen sc1")
    e("s_waitcnt vmcnt(0)")
    e(f"v_cmp_ne_u32 vcc, 0x03030303, v{FT+8}")
    e("s_cbranch_vccz L_yready")
    e("s_sleep 32")
    e("s_sub_u32 s57, s57, 1")
    e("s_cmp_lg_u32 s57, 0")
    e("s_cbranch_scc1 L_ypoll")
    e.lab("L_yready")
    e(f"s_mul_i32 s40, s42, {18*32768}")
    e("s_lshl_b32 s41, s56, 15")
    e("s_add_u32 s40, s40, s41")
    e(f"s_add_u32 s40, s40, {YP}")
    for t in range(16):
        e(f"buffer_load_dwordx4 {vr(FW+4*t,4)}, v{FA}, s[44:47], s40 offen offset:{(t&1)*2048} sc1")
        if t & 1:
            e("s_add_u32 s40, s40, 4096")
    def reduce_cols(n):
        for t in range(1, n):
            for i in range(4):
                e(f"v_add_f32 v{FW+i}, v{FW+i}, v{FW+4*t+i}")
        for ctrl in ("row_ror:4", "row_ror:8"):
            e("s_nop 1")
            for i in range(4):
                e(f"v_add_f32_dpp v{FW+i}, v{FW+i}, v{FW+i} {ctrl} {DPP}")
        transpose_reduce4(e, FW)
    e("s_waitcnt vmcnt(0)")
    reduce_cols(16)
    bf16r(e, FF, FW)
    silu_bf16(e, FF, FT+8)
    e(f"v_lshlrev_b32 v{FF+1}, 16, v{FF+1}")
    e(f"s_mul_i32 s40, s42, {18*16384}")
    e("s_lshl_b32 s41, s56, 14")
    e("s_add_u32 s40, s40, s41")
    e(f"s_add_u32 s40, s40, {SP}")
    e("s_add_u32 s41, s40, 4096")
    e("s_add_u32 s42, s40, 8192")
    e("s_add_u32 s43, s40, 12288")
    e(f"s_mov_b32 s57, {spin}")
    stamp("f", 3)
    e("s_setprio 3")
    e("s_barrier")
    e.lab("L_spoll")
    for t in range(8):
        e(f"buffer_load_dwordx4 {vr(FW+4*t,4)}, v{FA}, s[44:47], s{40+t//2} offen offset:{(t&1)*2048} sc1")
    for t in range(8):
        e(f"s_waitcnt vmcnt({7-t})")
        if t == 0:
            e(f"v_max3_u32 v{FT+8}, v{FW}, v{FW+1}, v{FW+2}")
            e(f"v_max_u32 v{FT+8}, v{FT+8}, v{FW+3}")
        else:
            e(f"v_max3_u32 v{FT+8}, v{FT+8}, v{FW+4*t}, v{FW+4*t+1}")
            e(f"v_max3_u32 v{FT+8}, v{FT+8}, v{FW+4*t+2}, v{FW+4*t+3}")
    e(f"v_cmp_eq_u32 vcc, -1, v{FT+8}")
    e("s_cbranch_vccz L_sready")
    e("s_sub_u32 s57, s57, 1")
    e("s_cmp_lg_u32 s57, 0")
    e("s_cbranch_scc1 L_spoll")
    e.lab("L_sready")
    stamp("f", 4)
    reduce_cols(8)
    bf16r(e, FW, FW)
    e(f"v_mul_f32 v{FW}, v{FW}, v{FF}")
    bf16r(e, FW, FW)
    e(f"v_add_f32 v{FW}, v{FW}, v{FF+1}")
    e(f"v_cvt_pk_bf16_f32 v{FW}, v{FW}, v{FW}")
    e("s_mov_b32 s56, 0x000f000f")
    e("s_mov_b32 s57, 0x000f000f")
    e("s_mov_b64 exec, s[56:57]")
    e(f"buffer_store_short v{FW}, v{FA+2}, s[88:91], 0 offen")
    stamp("f", 5)
    stamp_flush(6, 44)
    e.lab("L_end")
    e("s_endpgm")

    out = []
    out.append(HEADER.rstrip("\n"))
    out.append(f"; @launch grid=(256,1,1) block=(384,1,1) lds={LDS_BYTES}")
    out.append('.amdgcn_target "amdgcn-amd-amdhsa--gfx950"')
    out.append(".text")
    out.append(f".globl {KNAME}")
    out.append(".p2align 8")
    out.append(f".type {KNAME},@function")
    out.append(f"{KNAME}:")
    out += e.L
    out.append('.section .rodata,"a"')
    out.append(".p2align 6")
    out.append(f".amdhsa_kernel {KNAME}")
    out.append("  .amdhsa_next_free_vgpr 256")
    out.append("  .amdhsa_next_free_sgpr 96")
    out.append("  .amdhsa_accum_offset 256")
    out.append("  .amdhsa_group_segment_fixed_size 0")
    out.append("  .amdhsa_kernarg_size 96")
    out.append("  .amdhsa_user_sgpr_count 2")
    out.append("  .amdhsa_user_sgpr_kernarg_segment_ptr 1")
    out.append("  .amdhsa_system_sgpr_workgroup_id_x 1")
    out.append(".end_amdhsa_kernel")
    return "\n".join(out) + "\n"

if __name__ == "__main__":
    import json
    kw = json.loads(sys.argv[2]) if len(sys.argv) > 2 else {}
    open(sys.argv[1], "w").write(gen(**kw))
```

```python
import sys, struct

KNAME = "recurrent_scan__gqa_block_cached__swiglu_ffn__decode_kernel"
HEADER = open("recurrent_scan__gqa_block_cached__swiglu_ffn__decode.s.ref").read().split("; Override launch")[0] if len(sys.argv) > 0 else ""

def f32(x):
    return "0x%08x" % struct.unpack("<I", struct.pack("<f", x))[0]

LOG2E = 1.4426950408889634
SCALE = 128 ** -0.5

QP = 0
OP = 0x40000
ML = 0x80000
EPOCH = 0x88000
SP = 0x90000
YP = 0x130000
GP = 0x260000
TS = 0x300000
WS_USED = 0x400000
L_Q = 0
L_CNT = 512
L_XB = 1024
L_XF = 4096
L_O = 9216
L_ML = 13312
LDS_BYTES = 16384

class Em:
    def __init__(self):
        self.L = []
    def __call__(self, s):
        for x in s.split("\n"):
            x = x.strip()
            if x:
                self.L.append("    " + x)
    def lab(self, s):
        self.L.append(s + ":")
    def c(self, s):
        self.L.append("    ; " + s)

def vr(a, n):
    return f"v[{a}:{a+n-1}]"
def sr(a, n):
    return f"s[{a}:{a+n-1}]"

DPP = "row_mask:0xf bank_mask:0xf"

def srd(e, d, base, nrec, add=None):
    if add is None:
        e(f"s_mov_b32 s{d}, s{base}")
        e(f"s_mov_b32 s{d+1}, s{base+1}")
    else:
        e(f"s_add_u32 s{d}, s{base}, {add}")
        e(f"s_addc_u32 s{d+1}, s{base+1}, 0")
    e(f"s_mov_b32 s{d+2}, {nrec}")
    e(f"s_mov_b32 s{d+3}, 0x20000")

def masks(e, m, t0, t1):
    e(f"v_and_b32 v{t0}, 1, v0")
    e(f"v_lshlrev_b32 v{t0}, 4, v{t0}")
    e(f"v_mov_b32 v{t1}, 0xffff")
    e(f"v_lshlrev_b32 v{t0}, v{t0}, v{t1}")
    e(f"v_bfe_u32 v{t1}, v0, 1, 2")
    for i in range(4):
        e(f"v_cmp_eq_u32 vcc, {i}, v{t1}")
        e("s_nop 1")
        e(f"v_cndmask_b32 v{m+i}, 0, v{t0}, vcc")

def allred_rows(e, op, x, t):
    e(f"v_mov_b32 v{t}, v{x}")
    e("s_nop 1")
    e(f"v_permlane16_swap_b32 v{x}, v{t}")
    e("s_nop 1")
    e(f"{op} v{x}, v{x}, v{t}")
    e(f"v_mov_b32 v{t}, v{x}")
    e("s_nop 1")
    e(f"v_permlane32_swap_b32 v{x}, v{t}")
    e("s_nop 1")
    e(f"{op} v{x}, v{x}, v{t}")

def dpp_step(e, op, x, ctrl):
    e("s_nop 1")
    e(f"{op}_dpp v{x}, v{x}, v{x} {ctrl} {DPP}")

def transpose_reduce4(e, o):
    e("s_nop 1")
    e(f"v_permlane16_swap_b32 v{o}, v{o+1}")
    e(f"v_permlane16_swap_b32 v{o+2}, v{o+3}")
    e("s_nop 1")
    e(f"v_add_f32 v{o}, v{o}, v{o+1}")
    e(f"v_add_f32 v{o+2}, v{o+2}, v{o+3}")
    e("s_nop 1")
    e(f"v_permlane32_swap_b32 v{o}, v{o+2}")
    e("s_nop 1")
    e(f"v_add_f32 v{o}, v{o}, v{o+2}")

def bf16r(e, dst, src):
    e(f"v_cvt_pk_bf16_f32 v{dst}, v{src}, v{src}")
    e(f"v_and_b32 v{dst}, 0xffff0000, v{dst}")

def x_loads(e, xs, vx, vt):
    e(f"v_and_b32 v{vt}, 7, v0")
    e(f"v_lshrrev_b32 v{vt+1}, 4, v0")
    e(f"v_lshl_or_b32 v{vt}, v{vt+1}, 3, v{vt}")
    e(f"v_mul_u32_u24 v{vt}, 36, v{vt}")
    e(f"v_bfe_u32 v{vt+1}, v0, 3, 1")
    e(f"v_mul_u32_u24 v{vt+1}, 1152, v{vt+1}")
    e(f"v_add_u32 v{vt}, v{vt}, v{vt+1}")
    e(f"buffer_load_dwordx4 {vr(vx,4)}, v{vt}, {sr(xs,4)}, 0 offen")
    e(f"buffer_load_dwordx4 {vr(vx+4,4)}, v{vt}, {sr(xs,4)}, 0 offen offset:16")
    e(f"buffer_load_dword v{vx+8}, v{vt}, {sr(xs,4)}, 0 offen offset:32")

def red32(e, x, t):
    dpp_step(e, "v_add_f32", x, "quad_perm:[1,0,3,2]")
    dpp_step(e, "v_add_f32", x, "quad_perm:[2,3,0,1]")
    dpp_step(e, "v_add_f32", x, "row_half_mirror")
    allred_rows(e, "v_add_f32", x, t)

def layernorm(e, vx, vf, t):
    for i in range(9):
        e(f"v_lshlrev_b32 v{vf+2*i}, 16, v{vx+i}")
        e(f"v_and_b32 v{vf+2*i+1}, 0xffff0000, v{vx+i}")
    e(f"v_add_f32 v{t}, v{vf}, v{vf+1}")
    e(f"v_add_f32 v{t+1}, v{vf+2}, v{vf+3}")
    for i in range(4, 18, 2):
        e(f"v_add_f32 v{t}, v{t}, v{vf+i}")
        e(f"v_add_f32 v{t+1}, v{t+1}, v{vf+i+1}")
    e(f"v_add_f32 v{t}, v{t}, v{t+1}")
    red32(e, t, t+1)
    e(f"v_mul_f32 v{t}, {f32(1.0/576)}, v{t}")
    e(f"v_sub_f32 v{t+1}, v{vf}, v{t}")
    e(f"v_mul_f32 v{t+2}, v{t+1}, v{t+1}")
    e(f"v_sub_f32 v{t+1}, v{vf+1}, v{t}")
    e(f"v_mul_f32 v{t+3}, v{t+1}, v{t+1}")
    for i in range(2, 18, 2):
        e(f"v_sub_f32 v{t+1}, v{vf+i}, v{t}")
        e(f"v_fmac_f32 v{t+2}, v{t+1}, v{t+1}")
        e(f"v_sub_f32 v{t+1}, v{vf+i+1}, v{t}")
        e(f"v_fmac_f32 v{t+3}, v{t+1}, v{t+1}")
    e(f"v_add_f32 v{t+2}, v{t+2}, v{t+3}")
    red32(e, t+2, t+1)
    e(f"v_mul_f32 v{t+2}, {f32(1.0/576)}, v{t+2}")
    bf16r(e, t+2, t+2)
    e(f"v_add_f32 v{t+2}, {f32(1e-5)}, v{t+2}")
    bf16r(e, t+2, t+2)
    e(f"v_sqrt_f32 v{t+2}, v{t+2}")
    e("s_nop 0")
    bf16r(e, t+2, t+2)
    e(f"v_rcp_f32 v{t+2}, v{t+2}")
    bf16r(e, t, t)
    for i in range(0, 18, 2):
        e(f"v_sub_f32 v{vf+i}, v{vf+i}, v{t}")
        e(f"v_sub_f32 v{vf+i+1}, v{vf+i+1}, v{t}")
        e(f"v_cvt_pk_bf16_f32 v{t+1}, v{vf+i}, v{vf+i+1}")
        e(f"v_lshlrev_b32 v{vf+i}, 16, v{t+1}")
        e(f"v_and_b32 v{vf+i+1}, 0xffff0000, v{t+1}")
        e(f"v_mul_f32 v{vf+i}, v{vf+i}, v{t+2}")
        e(f"v_mul_f32 v{vf+i+1}, v{vf+i+1}, v{t+2}")
        e(f"v_cvt_pk_bf16_f32 v{vx+i//2}, v{vf+i}, v{vf+i+1}")

TAGC = 0x9E3779B9
def tag_setup(e, vmask):
    e(f"s_add_u32 s93, s92, {TAGC}")
    e("s_and_b32 s94, s93, 0xff")
    e(f"v_mov_b32 v{vmask}, 0xffffff00")
def tag_words(e, regs, vmask):
    for r in regs:
        e(f"v_and_or_b32 v{r}, v{r}, v{vmask}, s94")
def untag_words(e, regs, acc, first):
    regs = list(regs)
    for r in regs:
        e(f"v_xor_b32 v{r}, s94, v{r}")
    i = 0
    if first:
        e(f"v_or_b32 v{acc}, v{regs[0]}, v{regs[1]}")
        i = 2
    while i < len(regs):
        e(f"v_or3_b32 v{acc}, v{acc}, v{regs[i]}, v{regs[i+1]}")
        i += 2

def silu_bf16(e, x, t):
    e(f"v_mul_f32 v{t}, {f32(-LOG2E)}, v{x}")
    e(f"v_exp_f32 v{t}, v{t}")
    e("s_nop 0")
    e(f"v_add_f32 v{t}, 1.0, v{t}")
    e(f"v_rcp_f32 v{t}, v{t}")
    e("s_nop 0")
    e(f"v_mul_f32 v{x}, v{x}, v{t}")
    bf16r(e, x, x)

def gen(nbuf=4, ilv=False, pol="nt", wpol="nt", gpol="", stamps=False, bar1=True, spin=400000, qdelay=0, dyn=True, wopol='nt'):
    e = Em()
    ns = [0]
    def stamp(role, k):
        if stamps:
            e(f"s_memrealtime {sr(60+2*k,2)}")
    def stamp_flush(nst, wsrd):
        if stamps:
            e("s_waitcnt lgkmcnt(0)")
            e("s_mul_i32 s58, s2, 6")
            e("s_add_u32 s58, s58, s3")
            e("s_lshl_b32 s58, s58, 7")
            e(f"s_add_u32 s58, s58, {TS}")
            e("s_mov_b64 exec, 1")
            e("v_mov_b32 v1, 0")
            for k in range(nst):
                e(f"v_mov_b32 v2, s{60+2*k}")
                e(f"v_mov_b32 v3, s{61+2*k}")
                e(f"buffer_store_dwordx2 v[2:3], v1, {sr(wsrd,4)}, s58 offen offset:{8*k}")
            e("s_waitcnt vmcnt(0)")

    e("s_cmp_ge_u32 s2, 256")
    e("s_cbranch_scc1 L_end")
    stamp("all", 0)
    e("s_load_dwordx16 s[8:23], s[0:1], 0")
    e("s_load_dwordx8 s[24:31], s[0:1], 64")
    e("v_lshrrev_b32 v1, 6, v0")
    e("v_and_b32 v0, 63, v0")
    e("s_lshr_b32 s4, s2, 3")
    e("v_readfirstlane_b32 s3, v1")
    e("s_and_b32 s5, s2, 7")
    e("s_lshr_b32 s6, s4, 4")
    e("s_and_b32 s7, s4, 15")
    e("s_cmp_eq_u32 s3, 0")
    e("s_cbranch_scc1 L_hq")
    e("s_cmp_eq_u32 s3, 1")
    e("s_cbranch_scc1 L_hf")

    VK = 1; VV = 2
    VM = 4
    VQ = 8
    VS = 24
    VO = 28
    VMX = 32; VL = 33
    VT = 34
    VB = 48
    VBUF = 64
    kreg = lambda b, u: VBUF + b*32 + u*4
    vreg = lambda b, u: VBUF + b*32 + 16 + u*4
    e.c("streamers")
    e(f"v_and_b32 v3, 15, v0")
    e(f"v_lshrrev_b32 v{VT}, 4, v0")
    e(f"v_lshlrev_b32 v{VK}, 8, v3")
    e(f"v_lshl_or_b32 v{VK}, v{VT}, 4, v{VK}")
    e(f"v_lshlrev_b32 v{VV}, 4, v3")
    e(f"v_lshl_or_b32 v{VV}, v{VT}, 10, v{VV}")
    e("s_sub_u32 s42, s3, 2")
    e("s_lshl_b32 s40, s4, 23")
    if ilv:
        e("s_lshl_b32 s41, s5, 14"); tstride = 131072
    else:
        e("s_lshl_b32 s41, s5, 20"); tstride = 16384
    e("s_mov_b32 s53, s41")
    e("s_lshl_b32 s43, s42, 12")
    e("s_add_u32 s41, s41, s43")
    e("s_waitcnt lgkmcnt(0)")
    srd(e, 32, 10, 0x800000, add="s40")
    srd(e, 36, 12, 0x800000, add="s40")
    if stamps: srd(e, 44, 30, WS_USED)
    if bar1: e("s_barrier")
    def kloads(b):
        for u in range(4):
            e(f"buffer_load_dwordx4 {vr(kreg(b,u),4)}, v{VK}, s[32:35], s41 offen offset:{u*64} {pol}")
    def vloads(b, adv=True):
        for u in range(4):
            e(f"buffer_load_dwordx4 {vr(vreg(b,u),4)}, v{VV}, s[36:39], s41 offen offset:{u*256} {pol}")
        if adv: e(f"s_add_u32 s41, s41, {tstride}")
    VTK = 3
    VONE = 47
    def ticket():
        e("s_mov_b64 exec, 1")
        e(f"ds_add_rtn_u32 v{VTK}, v0, v{VONE} offset:{L_CNT}")
        e("s_mov_b64 exec, -1")
    for b in range(nbuf):
        kloads(b); vloads(b)
    masks(e, VM, VT, VT+1)
    e(f"v_mov_b32 v{VMX}, {f32(-3.0e38)}")
    e(f"v_mov_b32 v{VL}, 0")
    for i in range(4):
        e(f"v_mov_b32 v{VO+i}, 0")
    e(f"v_bfe_u32 v{VT}, v0, 3, 1")
    e(f"v_lshlrev_b32 v{VT}, 8, v{VT}")
    e(f"v_lshrrev_b32 v{VT+1}, 4, v0")
    e(f"v_lshl_or_b32 v{VT}, v{VT+1}, 4, v{VT}")
    e(f"s_mov_b32 s48, {f32(LOG2E)}")
    stamp("s", 1)
    e("s_barrier")
    for u in range(4):
        e(f"ds_read_b128 {vr(VQ+4*u,4)}, v{VT} offset:{L_Q+u*64}")
    if dyn:
        e(f"v_mov_b32 v{VONE}, 1")
        e("s_mov_b32 s50, 0")
        e(f"s_mov_b32 s51, {nbuf}")
        ticket()
    stamp("s", 2)
    e("s_waitcnt lgkmcnt(0)")

    def tile(b, reissue, cntk, cntv):
        if dyn:
            e("s_waitcnt lgkmcnt(0)")
            e(f"v_readfirstlane_b32 s52, v{VTK}")
            e("s_cmp_lt_u32 s52, 256")
            e(f"s_cbranch_scc1 L_tk{b}")
            e(f"v_mov_b32 v{VK}, 0x7f000000")
            e(f"v_mov_b32 v{VV}, 0x7f000000")
            e("s_mov_b32 s50, 1")
            e("s_mov_b32 s52, 0")
            e.lab(f"L_tk{b}")
            ticket()
            if ilv:
                e("s_lshr_b32 s41, s52, 2")
                e("s_lshl_b32 s41, s41, 17")
                e("s_and_b32 s52, s52, 3")
                e("s_lshl_b32 s52, s52, 12")
                e("s_add_u32 s41, s41, s52")
            else:
                e("s_lshl_b32 s41, s52, 12")
            e("s_add_u32 s41, s41, s53")
        e(f"s_waitcnt vmcnt({cntk})")
        for u in range(4):
            c = "0" if u == 0 else vr(VS, 4)
            e(f"v_mfma_f32_16x16x32_bf16 {vr(VS,4)}, {vr(kreg(b,u),4)}, {vr(VQ+4*u,4)}, {c}")
        if reissue:
            kloads(b)
            e("s_nop 3")
        else:
            e("s_nop 7")
        T = VT
        e(f"v_cvt_pk_bf16_f32 v{T}, v{VS}, v{VS+1}")
        e(f"v_cvt_pk_bf16_f32 v{T+1}, v{VS+2}, v{VS+3}")
        e(f"v_lshlrev_b32 v{T+2}, 16, v{T}")
        e(f"v_and_b32 v{T+3}, 0xffff0000, v{T}")
        e(f"v_lshlrev_b32 v{T+4}, 16, v{T+1}")
        e(f"v_and_b32 v{T+5}, 0xffff0000, v{T+1}")
        for i in range(4):
            e(f"v_mul_f32 v{T+2+i}, {f32(SCALE)}, v{T+2+i}")
        e(f"v_cvt_pk_bf16_f32 v{T}, v{T+2}, v{T+3}")
        e(f"v_cvt_pk_bf16_f32 v{T+1}, v{T+4}, v{T+5}")
        e(f"v_lshlrev_b32 v{T+2}, 16, v{T}")
        e(f"v_and_b32 v{T+3}, 0xffff0000, v{T}")
        e(f"v_lshlrev_b32 v{T+4}, 16, v{T+1}")
        e(f"v_and_b32 v{T+5}, 0xffff0000, v{T+1}")
        e(f"v_max3_f32 v{T+6}, v{T+2}, v{T+3}, v{T+4}")
        e(f"v_max3_f32 v{T+6}, v{T+6}, v{T+5}, v{VMX}")
        allred_rows(e, "v_max_f32", T+6, T+7)
        e(f"v_sub_f32 v{T+7}, v{VMX}, v{T+6}")
        e(f"v_mul_f32 v{T+8}, s48, v{T+6}")
        e(f"v_mul_f32 v{T+7}, s48, v{T+7}")
        e(f"v_mov_b32 v{VMX}, v{T+6}")
        e(f"v_exp_f32 v{T+7}, v{T+7}")
        for i in range(4):
            e(f"v_fma_f32 v{T+2+i}, v{T+2+i}, s48, -v{T+8}")
        for i in range(4):
            e(f"v_exp_f32 v{T+2+i}, v{T+2+i}")
        for i in range(4):
            e(f"v_mul_f32 v{VO+i}, v{VO+i}, v{T+7}")
        e(f"v_fma_f32 v{VL}, v{VL}, v{T+7}, v{T+2}")
        e(f"v_add_f32 v{T+8}, v{T+3}, v{T+4}")
        e(f"v_add_f32 v{VL}, v{VL}, v{T+5}")
        e(f"v_add_f32 v{VL}, v{VL}, v{T+8}")
        for u in range(4):
            e(f"v_cvt_pk_bf16_f32 v{T+9+u}, v{T+2+u}, v{T+2+u}")
        for u in range(4):
            for i in range(4):
                e(f"v_and_b32 v{VB+4*u+i}, v{T+9+u}, v{VM+i}")
        e(f"s_waitcnt vmcnt({cntv})")
        e("s_nop 0")
        for u in range(4):
            e(f"v_mfma_f32_16x16x32_bf16 {vr(VO,4)}, {vr(vreg(b,u),4)}, {vr(VB+4*u,4)}, {vr(VO,4)}")
        if reissue:
            vloads(b, not dyn)
        if dyn:
            e("s_sub_u32 s51, s51, s50")
            e("s_cmp_eq_u32 s51, 0")
            e("s_cbranch_scc1 L_sdone")

    NT = 64
    full = (2*nbuf - 1) * 4
    if dyn:
        e.lab("L_sloop")
        for b in range(nbuf):
            tile(b, True, full, full)
        e("s_branch L_sloop")
        e.lab("L_sdone")
        e("s_nop 4")
    else:
        assert NT % nbuf == 0
        e(f"s_mov_b32 s49, {NT//nbuf - 1}")
        e.lab("L_sloop")
        for b in range(nbuf):
            tile(b, True, full, full)
        e("s_sub_u32 s49, s49, 1")
        e("s_cmp_lg_u32 s49, 0")
        e("s_cbranch_scc1 L_sloop")
        for b in range(nbuf):
            rem = (nbuf - 1 - b) * 8
            tile(b, False, rem + 4, rem)
    stamp("s", 3)
    allred_rows(e, "v_add_f32", VL, VT)
    e(f"v_lshlrev_b32 v{VT}, 4, v0")
    e(f"s_lshl_b32 s43, s42, 10")
    e(f"v_add_u32 v{VT}, s43, v{VT}")
    e(f"v_lshlrev_b32 v{VT+1}, 3, v0")
    e(f"s_lshl_b32 s43, s42, 9")
    e(f"v_add_u32 v{VT+1}, s43, v{VT+1}")
    e(f"ds_write_b128 v{VT}, {vr(VO,4)} offset:{L_O}")
    e(f"ds_write_b64 v{VT+1}, {vr(VMX,2)} offset:{L_ML}")
    e("s_waitcnt lgkmcnt(0)")
    e("s_barrier")
    stamp_flush(4, 44)
    e("s_endpgm")

    e.lab("L_hq")
    e("s_setprio 3")
    HM = 4
    HX = 8
    HT = 18
    HF = 32
    HD = 52
    HA = 56
    HW = 64
    HB = 136
    e(f"v_lshrrev_b32 v{HT}, 4, v0")
    e(f"v_and_b32 v{HT+1}, 15, v0")
    e(f"v_and_b32 v{HT+2}, 7, v0")
    e(f"v_bfe_u32 v{HT+3}, v0, 3, 1")
    e(f"s_mul_i32 s40, s5, {72*8192}")
    e("s_lshl_b32 s41, s7, 1")
    e("s_add_u32 s41, s41, s6")
    e("s_lshl_b32 s41, s41, 8")
    e("s_add_u32 s40, s40, s41")
    e(f"v_mul_u32_u24 v{HA}, {18*8192}, v{HT}")
    e(f"v_lshl_add_u32 v{HA}, v{HT+1}, 4, v{HA}")
    e(f"v_add_u32 v{HA}, s40, v{HA}")
    e(f"v_lshl_add_u32 v{HA+1}, v{HT+3}, 2, v{HT}")
    e(f"v_lshlrev_b32 v{HA+1}, 10, v{HA+1}")
    e(f"v_lshl_add_u32 v{HA+1}, v{HT+2}, 4, v{HA+1}")
    e("s_lshl_b32 s40, s4, 13")
    e("s_lshl_b32 s41, s5, 7")
    e("s_add_u32 s40, s40, s41")
    e(f"s_add_u32 s40, s40, {OP}")
    e(f"v_add_u32 v{HA+1}, s40, v{HA+1}")
    e("s_lshl_b32 s40, s4, 8")
    e("s_lshl_b32 s41, s5, 4")
    e("s_add_u32 s40, s40, s41")
    e(f"s_add_u32 s40, s40, {ML}")
    e(f"v_lshlrev_b32 v{HA+2}, 7, v{HT+3}")
    e(f"v_add_u32 v{HA+2}, s40, v{HA+2}")
    e(f"s_mul_i32 s40, s6, {18*16384}")
    e("s_lshl_b32 s41, s7, 3")
    e("s_add_u32 s41, s41, s5")
    e("s_lshl_b32 s41, s41, 7")
    e("s_add_u32 s40, s40, s41")
    e(f"s_add_u32 s40, s40, {SP}")
    e(f"v_lshlrev_b32 v{HA+3}, 14, v{HT}")
    e(f"v_lshl_add_u32 v{HA+3}, v{HT+2}, 4, v{HA+3}")
    e(f"v_add_u32 v{HA+3}, s40, v{HA+3}")
    e("s_lshl_b32 s40, s7, 14")
    e("s_lshl_b32 s41, s6, 12")
    e("s_add_u32 s40, s40, s41")
    e("s_lshl_b32 s41, s5, 9")
    e("s_add_u32 s40, s40, s41")
    e(f"v_lshl_add_u32 v{HA+4}, v{HT}, 3, v{HT+2}")
    e(f"v_lshlrev_b32 v{HA+4}, 4, v{HA+4}")
    e(f"v_lshl_add_u32 v{HA+4}, v{HT+3}, 13, v{HA+4}")
    e(f"v_add_u32 v{HA+4}, s40, v{HA+4}")
    e("s_waitcnt lgkmcnt(0)")
    e(f"s_load_dword s92, s[30:31], {EPOCH}")
    srd(e, 32, 8, 2304)
    srd(e, 36, 14, 576*8192)
    srd(e, 44, 30, WS_USED)
    srd(e, 52, 16, 4096*1152)
    x_loads(e, 32, HX, HT+4)
    for u in range(18):
        e(f"s_mov_b32 s40, {u*8192}")
        e(f"buffer_load_dwordx4 {vr(HW+4*u,4)}, v{HA}, s[36:39], s40 offen {wpol}")
    e("s_mov_b32 s56, 0x00ff00ff")
    e("s_mov_b32 s57, 0x00ff00ff")
    if bar1: e("s_barrier")
    masks(e, HM, HT+6, HT+7)
    e("s_waitcnt vmcnt(18)")
    stamp("q", 1)
    layernorm(e, HX, HF, HT+8)
    for i in range(9):
        e(f"ds_write_b32 v{HT+4}, v{HX+i} offset:{L_XB+4*i}")
    e(f"s_mul_i32 s40, s5, 144")
    e(f"v_mul_u32_u24 v{HT+6}, 36, v{HT}")
    e(f"v_mul_u32_u24 v{HT+7}, 1152, v{HT+3}")
    e(f"v_add3_u32 v{HT+6}, v{HT+6}, v{HT+7}, s40")
    e("s_waitcnt lgkmcnt(0)")
    for i in range(9):
        e(f"ds_read_b32 v{HX+i}, v{HT+6} offset:{L_XB+4*i}")
    e("s_mov_b32 s40, 0x01000100")
    e("s_mov_b32 s41, 0x03020302")
    e("s_waitcnt lgkmcnt(0)")
    for u in range(18):
        e(f"v_perm_b32 v{HT+8}, v{HX+u//2}, v{HX+u//2}, s{40+(u&1)}")
        for i in range(4):
            e(f"v_and_b32 v{HB+4*u+i}, v{HT+8}, v{HM+i}")
    stamp("q", 2)
    for u in range(18):
        e(f"s_waitcnt vmcnt({17 - u})")
        c = "0" if u == 0 else vr(HD, 4)
        e(f"v_mfma_f32_16x16x32_bf16 {vr(HD,4)}, {vr(HW+4*u,4)}, {vr(HB+4*u,4)}, {c}")
    tag_setup(e, HA+7)
    e("s_lshl_b32 s40, s7, 14")
    e("s_lshl_b32 s41, s6, 13")
    e("s_add_u32 s40, s40, s41")
    e(f"v_and_b32 v{HT+8}, 31, v0")
    e(f"v_lshlrev_b32 v{HT+8}, 4, v{HT+8}")
    e(f"v_lshrrev_b32 v{HT+9}, 5, v0")
    e(f"v_lshl_add_u32 v{HT+8}, v{HT+9}, 12, v{HT+8}")
    tag_words(e, range(HD, HD+4), HA+7)
    e(f"buffer_store_dwordx4 {vr(HD,4)}, v{HA+4}, s[44:47], 0 offen sc1")
    stamp("q", 3)
    e(f"v_bfe_u32 v{HT+10}, v0, 3, 2")
    e(f"v_lshl_add_u32 v{HT+10}, v{HT+10}, 5, v{HT+2}")
    e(f"v_lshlrev_b32 v{HT+10}, 1, v{HT+10}")
    e(f"v_lshl_add_u32 v{HT+10}, v{HT+9}, 8, v{HT+10}")
    e(f"s_mov_b32 s42, {spin}")
    if qdelay: e(f"s_sleep {qdelay}")
    stamp("q", 4)
    e.lab("L_qpoll")
    for t in range(8):
        e(f"buffer_load_dwordx4 {vr(HW+4*t,4)}, v{HT+8}, s[44:47], s40 offen offset:{t*512} sc1")
    for t in range(8):
        e(f"s_waitcnt vmcnt({7-t})")
        untag_words(e, range(HW+4*t, HW+4*t+4), HT+11, t == 0)
        if t:
            for i in range(4):
                e(f"v_add_f32 v{HW+i}, v{HW+i}, v{HW+4*t+i}")
    e(f"v_and_b32 v{HT+11}, 0xff, v{HT+11}")
    e(f"v_cmp_ne_u32 vcc, 0, v{HT+11}")
    e("s_cbranch_vccz L_qready")
    e("s_sub_u32 s42, s42, 1")
    e("s_cmp_lg_u32 s42, 0")
    e("s_cbranch_scc1 L_qpoll")
    e.lab("L_qready")
    if stamps: e(f"s_sub_u32 s70, {spin}, s42"); e("s_mov_b32 s71, 0")
    e(f"v_cvt_pk_bf16_f32 v{HW}, v{HW}, v{HW+1}")
    e(f"v_cvt_pk_bf16_f32 v{HW+2}, v{HW+2}, v{HW+3}")
    e(f"v_mov_b32 v{HT+11}, {4*nbuf}")
    e(f"v_mov_b32 v{HT+12}, {L_CNT}")
    e(f"ds_write_b32 v{HT+12}, v{HT+11}")
    e(f"ds_write_b16 v{HT+10}, v{HW} offset:{L_Q}")
    e(f"ds_write_b16_d16_hi v{HT+10}, v{HW} offset:{L_Q+16}")
    e(f"ds_write_b16 v{HT+10}, v{HW+2} offset:{L_Q+32}")
    e(f"ds_write_b16_d16_hi v{HT+10}, v{HW+2} offset:{L_Q+48}")
    e("s_waitcnt lgkmcnt(0)")
    stamp("q", 6)
    e("s_barrier")
    e("s_setprio 0")
    WO = 64
    e("s_lshl_b32 s40, s7, 8")
    e("s_lshl_b32 s41, s5, 5")
    e("s_add_u32 s40, s40, s41")
    e("s_mul_i32 s40, s40, 1152")
    e(f"v_mul_u32_u24 v{HA}, {8*1152}, v{HT}")
    e(f"v_lshl_add_u32 v{HA}, v{HT+1}, 4, v{HA}")
    e(f"v_add_u32 v{HA}, s40, v{HA}")
    for u in range(8):
        e(f"s_mov_b32 s40, {u*1152}")
        for seg in range(5):
            e(f"buffer_load_dwordx4 {vr(WO+(u*5+seg)*4,4)}, v{HA}, s[52:55], s40 offen offset:{seg*256} {wopol}")
    e("s_lshl_b32 s40, s4, 13")
    e("s_lshl_b32 s41, s5, 10")
    e("s_add_u32 s40, s40, s41")
    e(f"s_add_u32 s40, s40, {OP}")
    e(f"v_lshlrev_b32 v{HA+5}, 4, v0")
    e(f"v_add_u32 v{HA+5}, s40, v{HA+5}")
    e("s_lshl_b32 s40, s4, 8")
    e("s_lshr_b32 s41, s5, 2")
    e("s_lshl_b32 s41, s41, 7")
    e("s_add_u32 s40, s40, s41")
    e(f"s_add_u32 s40, s40, {ML}")
    e(f"v_and_b32 v{HA+6}, 0x38, v0")
    e(f"v_lshlrev_b32 v{HA+6}, 1, v{HA+6}")
    e(f"v_add_u32 v{HA+6}, s40, v{HA+6}")
    e(f"v_lshlrev_b32 v{HT+4}, 4, v0")
    e(f"v_lshlrev_b32 v{HT+5}, 3, v0")
    e(f"s_mov_b32 s43, {f32(LOG2E)}")
    e("s_waitcnt vmcnt(0)")
    e("s_setprio 3")
    e("s_barrier")
    stamp("q", 7)
    TO = 224
    TML = 240
    for w in range(4):
        e(f"ds_read_b64 {vr(TML+2*w,2)}, v{HT+5} offset:{L_ML+512*w}")
    for w in range(4):
        e(f"ds_read_b128 {vr(TO+4*w,4)}, v{HT+4} offset:{L_O+1024*w}")
    e("s_waitcnt lgkmcnt(4)")
    X = 32
    e(f"v_max3_f32 v{X}, v{TML}, v{TML+2}, v{TML+4}")
    e(f"v_max_f32 v{X}, v{X}, v{TML+6}")
    for w in range(4):
        e(f"v_sub_f32 v{X+2+w}, v{TML+2*w}, v{X}")
    for w in range(4):
        e(f"v_mul_f32 v{X+2+w}, s43, v{X+2+w}")
    for w in range(4):
        e(f"v_exp_f32 v{X+2+w}, v{X+2+w}")
    e("s_nop 0")
    e(f"v_mul_f32 v{X+10}, v{X+2}, v{TML+1}")
    for w in range(1, 4):
        e(f"v_fmac_f32 v{X+10}, v{X+2+w}, v{TML+2*w+1}")
    e(f"v_mov_b32 v{X+8}, v{X}")
    e(f"v_mov_b32 v{X+9}, s93")
    e(f"v_mov_b32 v{X+11}, s93")
    e("s_waitcnt lgkmcnt(0)")
    for i in range(4):
        e(f"v_mul_f32 v{HD+i}, v{X+2}, v{TO+i}")
    for w in range(1, 4):
        for i in range(4):
            e(f"v_fmac_f32 v{HD+i}, v{X+2+w}, v{TO+4*w+i}")
    tag_words(e, range(HD, HD+4), HA+7)
    e(f"buffer_store_dwordx4 {vr(HD,4)}, v{HA+1}, s[44:47], 0 offen sc1")
    e("s_mov_b64 exec, 0x101")
    e(f"buffer_store_dwordx4 {vr(X+8,4)}, v{HA+2}, s[44:47], 0 offen sc1")
    e("s_mov_b64 exec, -1")
    stamp("q", 8)
    e(f"s_mov_b32 s42, {spin}")
    e.lab("L_opoll")
    e(f"buffer_load_dwordx4 {vr(TO,4)}, v{HA+5}, s[44:47], 0 offen sc1")
    e(f"buffer_load_dwordx4 {vr(TML,4)}, v{HA+6}, s[44:47], 0 offen sc1")
    e("s_waitcnt vmcnt(1)")
    untag_words(e, range(TO, TO+4), X+12, True)
    e(f"v_and_b32 v{X+12}, 0xff, v{X+12}")
    e("s_waitcnt vmcnt(0)")
    e(f"v_xor_b32 v{TML+1}, s93, v{TML+1}")
    e(f"v_xor_b32 v{TML+3}, s93, v{TML+3}")
    e(f"v_or3_b32 v{X+12}, v{X+12}, v{TML+1}, v{TML+3}")
    e(f"v_cmp_ne_u32 vcc, 0, v{X+12}")
    e("s_cbranch_vccz L_oready")
    e("s_sub_u32 s42, s42, 1")
    e("s_cmp_lg_u32 s42, 0")
    e("s_cbranch_scc1 L_opoll")
    e.lab("L_oready")
    stamp("q", 9)
    e(f"v_mov_b32 v{X}, v{TML}")
    dpp_step(e, "v_max_f32", X, "row_ror:8")
    allred_rows(e, "v_max_f32", X, X+1)
    e(f"v_sub_f32 v{X+1}, v{TML}, v{X}")
    e(f"v_mul_f32 v{X+1}, s43, v{X+1}")
    e(f"v_exp_f32 v{X+1}, v{X+1}")
    e("s_nop 0")
    e(f"v_mul_f32 v{X+2}, v{X+1}, v{TML+2}")
    for i in range(4):
        e(f"v_mul_f32 v{TO+i}, v{X+1}, v{TO+i}")
    e(f"v_add_f32_dpp v{X+2}, v{X+2}, v{X+2} row_ror:8 {DPP}")
    for i in range(4):
        e(f"v_add_f32_dpp v{TO+i}, v{TO+i}, v{TO+i} row_ror:8 {DPP}")
    allred_rows(e, "v_add_f32", X+2, X+3)
    transpose_reduce4(e, TO)
    e(f"v_rcp_f32 v{X+2}, v{X+2}")
    e("s_nop 0")
    e(f"v_mul_f32 v{TO}, v{TO}, v{X+2}")
    e(f"v_cvt_pk_bf16_f32 v{TO}, v{TO}, v{TO}")
    e("s_nop 1")
    BB = 8
    ACC = 32
    for u in range(8):
        bs = 228 + 4*(u & 1)
        for i in range(4):
            e(f"v_and_b32_dpp v{bs+i}, v{TO}, v{HM+i} row_newbcast:{u} {DPP}")
        e("s_nop 1")
        for seg in range(5):
            c = "0" if u == 0 else vr(ACC+4*seg, 4)
            e(f"v_mfma_f32_16x16x32_bf16 {vr(ACC+4*seg,4)}, {vr(WO+(u*5+seg)*4,4)}, {vr(bs,4)}, {c}")
    e("s_nop 3")
    e("s_mov_b64 exec, s[56:57]")
    for seg in range(5):
        if seg == 4:
            e("s_mov_b64 exec, 0x00ff00ff")
            e("s_nop 3")
        tag_words(e, range(ACC+4*seg, ACC+4*seg+4), HA+7)
        e(f"s_mov_b32 s40, {seg*65536}")
        e(f"buffer_store_dwordx4 {vr(ACC+4*seg,4)}, v{HA+3}, s[44:47], s40 offen sc1")
    stamp("q", 10)
    stamp_flush(11, 44)
    e("s_endpgm")

    e.lab("L_hf")
    FM = 4; FX = 8; FT = 18; FF = 32
    FA = 52
    FD = 60
    FW = 64
    FACC = 208
    e(f"v_lshrrev_b32 v{FT}, 4, v0")
    e(f"v_and_b32 v{FT+1}, 15, v0")
    e(f"v_and_b32 v{FT+2}, 7, v0")
    e(f"v_bfe_u32 v{FT+3}, v0, 3, 1")
    e("s_mul_i32 s42, s2, 0x5556")
    e("s_lshr_b32 s42, s42, 16")
    e("s_mul_i32 s43, s42, 3")
    e("s_sub_u32 s43, s2, s43")
    e("s_cmp_ge_u32 s42, 36")
    e("s_cselect_b32 s59, 1, 0")
    e("s_mul_i32 s40, s59, 36")
    e("s_sub_u32 s42, s42, s40")
    e(f"s_mul_i32 s40, s43, {192*9216}")
    e("s_lshl_b32 s41, s42, 8")
    e("s_add_u32 s40, s40, s41")
    e(f"v_mul_u32_u24 v{FA}, {48*9216}, v{FT}")
    e(f"v_lshl_add_u32 v{FA}, v{FT+1}, 4, v{FA}")
    e(f"v_add_u32 v{FA}, s40, v{FA}")
    e(f"v_mov_b32 v{FA+2}, 0x7f000000")
    e(f"v_cmp_eq_u32 vcc, 3, v{FT}")
    e(f"s_mul_i32 s40, s2, {18*1152}")
    e(f"v_mul_u32_u24 v{FA+1}, {6*1152}, v{FT}")
    e(f"v_lshl_add_u32 v{FA+1}, v{FT+1}, 4, v{FA+1}")
    e(f"v_add_u32 v{FA+1}, s40, v{FA+1}")
    e(f"v_cndmask_b32 v{FA+1}, v{FA+1}, v{FA+2}, vcc")
    e(f"s_mul_i32 s40, s2, 144")
    e(f"s_add_u32 s40, s40, {GP}")
    e(f"v_mul_u32_u24 v{FA+4}, 48, v{FT}")
    e(f"v_mul_u32_u24 v{FA+5}, 36864, v{FT+3}")
    e(f"v_add3_u32 v{FA+4}, v{FA+4}, v{FA+5}, s40")
    e("s_mul_i32 s40, s59, 3")
    e("s_add_u32 s40, s40, s43")
    e("s_mul_i32 s40, s40, 73728")
    e("s_lshl_b32 s41, s42, 10")
    e("s_add_u32 s40, s40, s41")
    e(f"s_add_u32 s40, s40, {GP}")
    e(f"v_lshl_add_u32 v{FA+6}, v{FT}, 5, v{FT+2}")
    e(f"v_lshlrev_b32 v{FA+6}, 3, v{FA+6}")
    e(f"v_add3_u32 v{FA+6}, v{FA+6}, v{FA+5}, s40")
    e("s_waitcnt lgkmcnt(0)")
    e(f"s_load_dword s92, s[30:31], {EPOCH}")
    srd(e, 32, 8, 2304)
    e("s_cmp_eq_u32 s59, 0")
    e("s_cselect_b32 s36, s20, s22")
    e("s_cselect_b32 s37, s21, s23")
    e(f"s_mov_b32 s38, {576*9216}")
    e("s_mov_b32 s39, 0x20000")
    srd(e, 44, 30, WS_USED)
    srd(e, 84, 24, 4608*1152)
    srd(e, 88, 26, 2304)
    masks(e, FM, FT+6, FT+7)
    e("s_cmp_lt_u32 s2, 216")
    e("s_cbranch_scc1 L_gu")
    if bar1: e("s_barrier")
    e("s_waitcnt lgkmcnt(0)")
    tag_setup(e, FA+7)
    e("s_barrier")
    e("s_branch L_gudone")
    e.lab("L_gu")
    x_loads(e, 32, FX, FT+4)
    if bar1: e("s_barrier")
    for u in range(48):
        e(f"s_mov_b32 s40, {u*9216}")
        e(f"buffer_load_dwordx4 {vr(FW+4*u,4)}, v{FA}, s[36:39], s40 offen {wpol}")
    e("s_waitcnt vmcnt(48)")
    layernorm(e, FX, FF, FT+8)
    for i in range(9):
        e(f"ds_write_b32 v{FT+4}, v{FX+i} offset:{L_XF+4*i}")
    e("s_mul_i32 s40, s43, 384")
    e(f"v_mul_u32_u24 v{FT+6}, 96, v{FT}")
    e(f"v_mul_u32_u24 v{FT+7}, 1152, v{FT+3}")
    e(f"v_add3_u32 v{FT+6}, v{FT+6}, v{FT+7}, s40")
    e("s_waitcnt lgkmcnt(0)")
    FXD = 28
    for i in range(6):
        e(f"ds_read_b128 {vr(FXD+4*i,4)}, v{FT+6} offset:{L_XF+16*i}")
    e("s_mov_b32 s40, 0x01000100")
    e("s_mov_b32 s41, 0x03020302")
    e("s_waitcnt lgkmcnt(0)")
    tag_setup(e, FA+7)
    stamp("f", 1)
    e("s_barrier")
    for u in range(48):
        bs = 8 + 4*(u & 1)
        e(f"v_perm_b32 v{FT+8}, v{FXD+u//2}, v{FXD+u//2}, s{40+(u&1)}")
        for i in range(4):
            e(f"v_and_b32 v{bs+i}, v{FT+8}, v{FM+i}")
        e(f"s_waitcnt vmcnt({47-u})")
        e("s_nop 0")
        c = "0" if u == 0 else vr(FD, 4)
        e(f"v_mfma_f32_16x16x32_bf16 {vr(FD,4)}, {vr(FW+4*u,4)}, {vr(bs,4)}, {c}")
    for i in range(4):
        e(f"v_mov_b32 v{FF+2*i+1}, s93")
    e("s_nop 3")
    for i in range(4):
        e(f"v_mov_b32 v{FF+2*i}, v{FD+i}")
    for i in range(4):
        e(f"buffer_store_dwordx2 {vr(FF+2*i,2)}, v{FA+6}, s[44:47], 0 offen offset:{64*i} sc1")
    e.lab("L_gudone")
    stamp("f", 6)
    for t in range(30):
        u, seg = divmod(t, 5)
        e(f"s_mov_b32 s40, {u*1152}")
        e(f"buffer_load_dwordx4 {vr(FW+4*t,4)}, v{FA+1}, s[84:87], s40 offen offset:{seg*256} {wpol}")
    e(f"s_mov_b32 s57, {spin}")
    for cidx in range(12):
        e(f"v_mov_b32 v{FF+8+cidx}, 0")
    stamp("f", 7)
    e("s_mov_b32 exec_hi, 0xffff")
    FG = 184
    e.lab("L_gpoll")
    e("s_sleep 64")
    for mr in range(6):
        e(f"s_mov_b32 s40, {mr*73728}")
        for k in range(3):
            e(f"buffer_load_dwordx4 {vr(FG+12*mr+4*k,4)}, v{FA+4}, s[44:47], s40 offen offset:{16*k} sc1")
    e("s_waitcnt vmcnt(0)")
    e(f"v_xor_b32 v{FT+8}, s93, v{FG+1}")
    for r in range(3, 72, 2):
        e(f"v_bitop3_b32 v{FT+8}, v{FT+8}, v{FG+r}, s93 bitop3:0xf6")
    e(f"v_cmp_ne_u32 vcc, 0, v{FT+8}")
    e("s_cbranch_vccz L_gready")
    e("s_sub_u32 s57, s57, 1")
    e("s_cmp_lg_u32 s57, 0")
    e("s_cbranch_scc1 L_gpoll")
    e.lab("L_gready")
    stamp("f", 8)
    if stamps: e(f"s_sub_u32 s78, {spin}, s57"); e("s_mov_b32 s79, 0")
    FF = FF + 8
    for m in range(2):
        for cidx in range(6):
            e(f"v_add_f32 v{FF+6*m+cidx}, v{FG+36*m+2*cidx}, v{FG+36*m+12+2*cidx}")
            e(f"v_add_f32 v{FF+6*m+cidx}, v{FF+6*m+cidx}, v{FG+36*m+24+2*cidx}")
    e("s_mov_b64 exec, -1")
    for cidx in range(12):
        bf16r(e, FF+cidx, FF+cidx)
    for cidx in range(6):
        silu_bf16(e, FF+cidx, FT+8)
        e(f"v_mul_f32 v{FF+cidx}, v{FF+cidx}, v{FF+6+cidx}")
        e(f"v_cvt_pk_bf16_f32 v{FF+cidx}, v{FF+cidx}, v{FF+cidx}")
    FB = 184
    for u in range(6):
        for i in range(4):
            e(f"v_and_b32 v{FB+4*u+i}, v{FF+u}, v{FM+i}")
    e(f"v_mul_u32_u24 v{FA+3}, {18*32768}, v{FT+3}")
    e(f"v_lshl_add_u32 v{FA+3}, v{FT}, 15, v{FA+3}")
    e(f"v_lshl_add_u32 v{FA+3}, v{FT+2}, 4, v{FA+3}")
    e("s_waitcnt vmcnt(0)")
    for u in range(6):
        for seg in range(5):
            c = "0" if u == 0 else vr(FACC+4*seg, 4)
            e(f"v_mfma_f32_16x16x32_bf16 {vr(FACC+4*seg,4)}, {vr(FW+(u*5+seg)*4,4)}, {vr(FB+4*u,4)}, {c}")
    e("s_lshl_b32 s41, s2, 7")
    e(f"s_add_u32 s41, s41, {YP}")
    e("s_nop 7")
    for seg in range(5):
        if seg == 4:
            e("s_mov_b32 exec_hi, 0")
        e(f"s_add_u32 s40, s41, {seg*131072}")
        tag_words(e, range(FACC+4*seg, FACC+4*seg+4), FA+7)
        e(f"buffer_store_dwordx4 {vr(FACC+4*seg,4)}, v{FA+3}, s[44:47], s40 offen sc1")
    e("s_mov_b64 exec, -1")
    stamp("f", 2)
    e("s_cmp_lt_u32 s2, 72")
    e("s_cbranch_scc1 L_final")
    stamp_flush(10, 44)
    e("s_endpgm")
    e.lab("L_final")
    e("s_cmp_ge_u32 s2, 36")
    e("s_cselect_b32 s42, 1, 0")
    e("s_mul_i32 s40, s42, 36")
    e("s_sub_u32 s40, s2, s40")
    e("s_and_b32 s43, s40, 1")
    e("s_lshr_b32 s56, s40, 1")
    e(f"v_lshrrev_b32 v{FA}, 2, v0")
    e(f"v_lshlrev_b32 v{FA}, 7, v{FA}")
    e(f"v_and_b32 v{FA+1}, 3, v0")
    e(f"v_lshl_add_u32 v{FA}, v{FA+1}, 4, v{FA}")
    e("s_lshl_b32 s40, s43, 6")
    e(f"v_add_u32 v{FA}, s40, v{FA}")
    e("s_mul_i32 s40, s42, 576")
    e("s_lshl_b32 s41, s56, 5")
    e("s_add_u32 s40, s40, s41")
    e("s_lshl_b32 s41, s43, 2")
    e("s_add_u32 s40, s40, s41")
    e(f"v_lshl_add_u32 v{FA+2}, v{FT}, 3, v{FA+1}")
    e(f"v_add_u32 v{FA+2}, s40, v{FA+2}")
    e(f"v_lshlrev_b32 v{FA+2}, 1, v{FA+2}")
    e(f"buffer_load_ushort v{FF+1}, v{FA+2}, s[32:35], 0 offen")
    e(f"s_mov_b32 s57, {spin}")
    e.lab("L_ypoll")
    e("s_sleep 127")
    e(f"s_mul_i32 s40, s42, {18*32768}")
    e("s_lshl_b32 s41, s56, 15")
    e("s_add_u32 s40, s40, s41")
    e(f"s_add_u32 s40, s40, {YP}")
    for t in range(16):
        e(f"buffer_load_dwordx4 {vr(FW+4*t,4)}, v{FA}, s[44:47], s40 offen offset:{(t&1)*2048} sc1")
        if t & 1:
            e("s_add_u32 s40, s40, 4096")
    e("s_waitcnt vmcnt(0)")
    untag_words(e, range(FW, FW+64), FT+8, True)
    e(f"v_and_b32 v{FT+8}, 0xff, v{FT+8}")
    e(f"v_cmp_ne_u32 vcc, 0, v{FT+8}")
    e("s_cbranch_vccz L_yready")
    e("s_sub_u32 s57, s57, 1")
    e("s_cmp_lg_u32 s57, 0")
    e("s_cbranch_scc1 L_ypoll")
    e.lab("L_yready")
    e("s_cmp_lg_u32 s2, 0")
    e("s_cbranch_scc1 L_noepoch")
    e("s_mov_b64 exec, 1")
    e(f"v_mov_b32 v{FT+8}, s93")
    e(f"s_mov_b32 s40, {EPOCH}")
    e(f"buffer_store_dword v{FT+8}, off, s[44:47], s40")
    e("s_mov_b64 exec, -1")
    e.lab("L_noepoch")
    def reduce_cols(n):
        for t in range(1, n):
            for i in range(4):
                e(f"v_add_f32 v{FW+i}, v{FW+i}, v{FW+4*t+i}")
        for ctrl in ("row_ror:4", "row_ror:8"):
            e("s_nop 1")
            for i in range(4):
                e(f"v_add_f32_dpp v{FW+i}, v{FW+i}, v{FW+i} {ctrl} {DPP}")
        transpose_reduce4(e, FW)
    reduce_cols(16)
    bf16r(e, FF, FW)
    silu_bf16(e, FF, FT+8)
    e(f"v_lshlrev_b32 v{FF+1}, 16, v{FF+1}")
    e(f"s_mul_i32 s40, s42, {18*16384}")
    e("s_lshl_b32 s41, s56, 14")
    e("s_add_u32 s40, s40, s41")
    e(f"s_add_u32 s40, s40, {SP}")
    e("s_add_u32 s41, s40, 4096")
    e("s_add_u32 s42, s40, 8192")
    e("s_add_u32 s43, s40, 12288")
    e(f"s_mov_b32 s57, {spin}")
    stamp("f", 3)
    e("s_setprio 3")
    e("s_barrier")
    e.lab("L_spoll")
    for t in range(8):
        e(f"buffer_load_dwordx4 {vr(FW+4*t,4)}, v{FA}, s[44:47], s{40+t//2} offen offset:{(t&1)*2048} sc1")
    for t in range(8):
        e(f"s_waitcnt vmcnt({7-t})")
        untag_words(e, range(FW+4*t, FW+4*t+4), FT+8, t == 0)
    e(f"v_and_b32 v{FT+8}, 0xff, v{FT+8}")
    e(f"v_cmp_ne_u32 vcc, 0, v{FT+8}")
    e("s_cbranch_vccz L_sready")
    e("s_sub_u32 s57, s57, 1")
    e("s_cmp_lg_u32 s57, 0")
    e("s_cbranch_scc1 L_spoll")
    e.lab("L_sready")
    stamp("f", 4)
    reduce_cols(8)
    bf16r(e, FW, FW)
    e(f"v_mul_f32 v{FW}, v{FW}, v{FF}")
    bf16r(e, FW, FW)
    e(f"v_add_f32 v{FW}, v{FW}, v{FF+1}")
    e(f"v_cvt_pk_bf16_f32 v{FW}, v{FW}, v{FW}")
    e("s_mov_b32 s56, 0x000f000f")
    e("s_mov_b32 s57, 0x000f000f")
    e("s_mov_b64 exec, s[56:57]")
    e(f"buffer_store_short v{FW}, v{FA+2}, s[88:91], 0 offen")
    stamp("f", 5)
    stamp_flush(10, 44)
    e.lab("L_end")
    e("s_endpgm")

    out = []
    out.append(HEADER.rstrip("\n"))
    out.append(f"; @launch grid=(256,1,1) block=(384,1,1) lds={LDS_BYTES}")
    out.append('.amdgcn_target "amdgcn-amd-amdhsa--gfx950"')
    out.append(".text")
    out.append(f".globl {KNAME}")
    out.append(".p2align 8")
    out.append(f".type {KNAME},@function")
    out.append(f"{KNAME}:")
    out += e.L
    out.append('.section .rodata,"a"')
    out.append(".p2align 6")
    out.append(f".amdhsa_kernel {KNAME}")
    out.append("  .amdhsa_next_free_vgpr 256")
    out.append("  .amdhsa_next_free_sgpr 96")
    out.append("  .amdhsa_accum_offset 256")
    out.append("  .amdhsa_group_segment_fixed_size 0")
    out.append("  .amdhsa_kernarg_size 96")
    out.append("  .amdhsa_user_sgpr_count 2")
    out.append("  .amdhsa_user_sgpr_kernarg_segment_ptr 1")
    out.append("  .amdhsa_system_sgpr_workgroup_id_x 1")
    out.append(".end_amdhsa_kernel")
    return "\n".join(out) + "\n"

if __name__ == "__main__":
    import json
    kw = json.loads(sys.argv[2]) if len(sys.argv) > 2 else {}
    open(sys.argv[1], "w").write(gen(**kw))
```
